```python
import torch

def _softmax(x, axis=-1):
    return torch.softmax(x, dim=axis)
def _gelu(x):
    return torch.nn.functional.gelu(x, approximate="tanh")
def _silu(x):
    return torch.nn.functional.silu(x)
def _sigmoid(x):
    return torch.sigmoid(x)
def _layernorm(x, axis=-1, eps=1e-5):
    m = x.mean(dim=axis, keepdim=True)
    v = x.var(dim=axis, keepdim=True, unbiased=False)
    return (x - m) / torch.sqrt(v + eps)
def _scatter_add(tgt, idx, src, axis=0):
    return tgt.clone().index_add_(axis, idx, src)
def _segment_sum(src, seg, n):
    out = torch.zeros((n,) + src.shape[1:], dtype=src.dtype)
    return out.index_add_(0, seg, src)
def _pad(x, pw):
    flat = tuple(v for pair in reversed(pw) for v in pair)
    return torch.nn.functional.pad(x, flat)

kernel_name = 'sequential_preLN__spectral_gfnet__glu_gated_bilinear__prompt'

def setup_inputs():

    _w = (lambda a: (lambda t: t.to(torch.bfloat16) if t.is_floating_point() else t)(torch.as_tensor(a)))
    def _A_setup():
        B, S, D = 1, 2048, 1024
        Df = D // 2 + 1
        return {
            "x": _w((lambda *s: torch.randn(*s, dtype=torch.bfloat16) * 0.05)(B, S, D)),
            "w_r": _w((lambda *s: torch.randn(*s, dtype=torch.bfloat16) * 0.4)(S, Df) * 0.02),
            "w_i": _w((lambda *s: torch.randn(*s, dtype=torch.bfloat16) * 0.4)(S, Df) * 0.02),
        }
    _A_in = _A_setup()

    def _B_setup():
        B, S, D, F = 1, 2048, 1024, 3584
        return {
            "x": _w((lambda *s: torch.randn(*s, dtype=torch.bfloat16) * 0.05)(B, S, D)),
            "w_gate": _w((lambda *s: torch.randn(*s, dtype=torch.bfloat16) * 0.2)(D, F) * (D ** -0.5)),
            "w_up": _w((lambda *s: torch.randn(*s, dtype=torch.bfloat16) * 0.2)(D, F) * (D ** -0.5)),
            "w_down": _w((lambda *s: torch.randn(*s, dtype=torch.bfloat16) * 0.2)(F, D) * (F ** -0.5)),
        }
    _B_in = _B_setup()

    return {
        "A_x": _A_in["x"],
        "A_w_r": _A_in["w_r"],
        "A_w_i": _A_in["w_i"],
        "B_x": _B_in["x"],
        "B_w_gate": _B_in["w_gate"],
        "B_w_up": _B_in["w_up"],
        "B_w_down": _B_in["w_down"],
    }

def reference(A_x, A_w_r, A_w_i, B_x, B_w_gate, B_w_up, B_w_down):
    def _A_ref(x, w_r, w_i):
        B, S, D = x.shape
        X = (lambda x, axes=(-2,-1): torch.fft.rfft2(x.float(), dim=axes))(x, axes=(-2, -1))
        W = w_r + 1j * w_i
        X = X * W
        y = (lambda x, s, axes=(-2,-1): torch.fft.irfft2(x, s=s, dim=axes).to(torch.bfloat16))(X, (S, D), axes=(-2, -1))
        return y

    def _B_ref(x, w_gate, w_up, w_down):
        g = torch.einsum("bsd,df->bsf", x, w_gate)
        u = torch.einsum("bsd,df->bsf", x, w_up)
        h = g * u
        return torch.einsum("bsf,fd->bsd", h, w_down)

    x = A_x
    h = x + _A_ref(_layernorm(x, axis=-1), A_w_r, A_w_i)
    h2 = h + _B_ref(_layernorm(h, axis=-1), B_w_gate, B_w_up, B_w_down)
    return h2
```

```python
import re

TRANS = ("v_exp_", "v_log_", "v_rcp_", "v_rsq_", "v_sqrt_", "v_sin_", "v_cos_")

def regs_of(tok):
    tok = tok.strip().lstrip("-")
    if tok.startswith("abs(") or tok.startswith("|"):
        tok = tok.strip("|").replace("abs(", "").rstrip(")")
    m = re.fullmatch(r"([vas])(\d+)", tok)
    if m: return [(m.group(1), int(m.group(2)))]
    m = re.fullmatch(r"([vas])\[(\d+):(\d+)\]", tok)
    if m: return [(m.group(1), i) for i in range(int(m.group(2)), int(m.group(3)) + 1)]
    if tok in ("vcc", "exec", "m0"): return [(tok, 0)]
    if tok in ("vcc_lo", "vcc_hi"): return [("vcc", 0)]
    if tok in ("exec_lo", "exec_hi"): return [("exec", 0)]
    return []

class Ins:
    def __init__(self, text):
        self.text = text
        t = text.split(";")[0].strip()
        self.label = None; self.op = None
        self.defs = set(); self.uses = set(); self.srcc = set(); self.srcab = set(); self.sdata = set()
        self.kind = "other"; self.ws = 1
        if not t or t.startswith("."):
            self.kind = "nop0"; self.ws = 0; return
        if t.endswith(":"):
            self.label = t[:-1]; self.kind = "label"; self.ws = 0; return
        p = t.split(None, 1); op = self.op = p[0]
        rest = p[1] if len(p) > 1 else ""
        ops = []
        for part in re.split(r",(?![^\[]*\])", rest):
            ops.append(part.strip().split()[0] if part.strip() else "")
        self.ops = ops; R = [regs_of(o) for o in ops]
        flat = lambda xs: set(r for x in xs for r in x)
        self.dpp = bool(re.search(r"row_|quad_perm|wave_", rest))
        if op == "s_nop": self.kind = "snop"; self.ws = int(ops[0], 0) + 1
        elif op.startswith("v_mfma"):
            self.kind = "mfma"; self.passes = 8 if "32x32" in op else 4
            self.defs = set(R[0]); self.srcab = flat(R[1:3]); self.srcc = set(R[3]); self.uses = self.srcab | self.srcc
            self.dlist = R[0]; self.clist = R[3]
        elif op.startswith("v_"):
            self.kind = "valu"; self.trans = op.startswith(TRANS)
            if op.startswith("v_permlane") and "swap" in op: self.defs = flat(R[:2]); self.uses = flat(R[:2])
            elif re.match(r"v_(add|sub|subrev)_co|v_(addc|subb)_co", op): self.defs = flat(R[:2]); self.uses = flat(R[2:])
            else:
                self.defs = set(R[0]); self.uses = flat(R[1:])
                if re.match(r"v_(fmac|mac|dot2c|pk_fmac|writelane)", op) or self.dpp: self.uses |= set(R[0])
                if op.startswith("v_cndmask") and len(ops) == 3: self.uses.add(("vcc", 0))
        elif op.startswith("buffer_") or op.startswith("global_"):
            self.kind = "vmem"; lds = bool(re.search(r"\blds\b", rest)) or "load_lds" in op
            self.lds = lds
            if lds: self.uses = flat(R) | {("m0", 0)}
            elif "load" in op: self.defs = set(R[0]); self.uses = flat(R[1:])
            elif op.startswith("buffer_"):
                self.uses = flat(R); self.sdata = set(R[0]) if re.search(r"x3|x4", op) else set()
            else:
                self.uses = flat(R); self.sdata = set(R[1]) if re.search(r"x3|x4", op) else set()
            if op in ("buffer_wbl2", "buffer_inv"): self.uses = set(); self.defs = set()
        elif op.startswith("ds_"):
            self.kind = "ds"
            if "read" in op or "permute" in op or "swizzle" in op: self.defs = set(R[0]); self.uses = flat(R[1:])
            else: self.uses = flat(R)
        elif op.startswith("s_"):
            self.kind = "salu"
            if op.startswith(("s_cmp", "s_waitcnt", "s_barrier", "s_branch", "s_cbranch", "s_endpgm", "s_setprio", "s_sleep", "s_bitcmp")):
                self.uses = flat(R)
            else:
                self.defs = set(R[0]) if R else set(); self.uses = flat(R[1:])
                if "saveexec" in op: self.defs.add(("exec", 0))

def need(p, c):
    n = 0
    vec = lambda s: {r for r in s if r[0] in "va" and len(r[0]) == 1}
    sca = lambda s: {r for r in s if r[0] in ("s", "vcc")}
    if p.kind == "valu":
        d = vec(p.defs); sd = sca(p.defs)
        if c.kind == "mfma" and d & c.uses: n = max(n, 2)
        if c.kind == "valu":
            if p.trans and not c.trans and d & c.uses: n = max(n, 1)
            if (c.dpp or c.op.startswith("v_permlane")) and d & c.uses: n = max(n, 2)
            if c.op.startswith(("v_readlane", "v_readfirstlane")) and d & c.uses: n = max(n, 1)
            if sd & c.uses: n = max(n, 4 if c.op.startswith(("v_readlane", "v_writelane")) else 2)
        if c.kind == "vmem" and sd & c.uses: n = max(n, 5)
        if ("exec", 0) in p.defs: raise Exception("VALU exec write not modelled")
    if p.kind == "mfma":
        big = p.passes == 8
        if c.kind == "mfma":
            if p.defs & c.srcab: n = max(n, 12 if big else 8)
            if p.defs & c.srcc and not (p.dlist == c.clist and p.passes == c.passes): n = max(n, 10 if big else 6)
            if p.defs & c.defs and not (p.defs & c.srcc): n = max(n, 10 if big else 6)
        elif c.kind in ("valu", "vmem", "ds"):
            if p.defs & (c.uses | c.defs): n = max(n, 12 if big else 8)
            if c.kind == "valu" and p.srcc & c.defs: n = max(n, 7 if big else 3)
    if p.kind == "salu" and ("m0", 0) in p.defs and c.kind == "vmem" and getattr(c, "lds", False): n = max(n, 1)
    if p.kind == "vmem" and p.sdata and p.sdata & c.defs: n = max(n, 2 if c.kind in ("valu", "mfma") else 1)
    return n

class Asm:
    def __init__(self): self.L = []
    def __call__(self, s):
        if isinstance(s, (list, tuple)):
            for x in s: self(x)
            return
        for line in s.split("\n"):
            if line.strip(): self.L.append(line.strip())
    def finish(self):
        ins = [Ins(t) for t in self.L]; out = []; self.nops = 0
        for c in ins:
            if c.kind in ("valu", "mfma", "vmem", "ds", "salu"):
                dist = 0; pad = 0
                for p in reversed(out):
                    if dist >= 14: break
                    if p.op in ("s_branch", "s_endpgm"): break
                    k = need(p, c)
                    if k > dist: pad = max(pad, k - dist)
                    dist += p.ws
                if pad:
                    out.append(Ins(f"s_nop {pad - 1}")); self.nops += 1
            out.append(c)
        lab = {x.label: i for i, x in enumerate(out) if x.label}
        for i, b in enumerate(out):
            if b.op and b.op.startswith(("s_branch", "s_cbranch")) and b.ops[0] in lab:
                head = out[lab[b.ops[0]]:lab[b.ops[0]] + 40]
                dh = 0
                for c in head:
                    if dh >= 14: break
                    dist = dh + 1
                    for p in reversed(out[max(0, i - 20):i]):
                        if dist >= 14: break
                        if c.op and p.op and need(p, c) > dist:
                            raise Exception(f"hazard across branch {b.text}: {p.text} -> {c.text}")
                        dist += p.ws
                    dh += c.ws
                    if c.op in ("s_branch", "s_endpgm"): break
        return "\n".join(("" if x.label else "    ") + x.text for x in out)

def interleave(main, fill, per=1, start=0):
    out = []; fill = list(fill); k = 0; acc = 0.0
    for i, m in enumerate(main):
        out.append(m)
        if i >= start:
            acc += per
            while acc >= 1 and k < len(fill):
                out.append(fill[k]); k += 1; acc -= 1
    return out + fill[k:]

def vr(n, c=1): return f"v{n}" if c == 1 else f"v[{n}:{n + c - 1}]"
def ar(n, c=1): return f"a{n}" if c == 1 else f"a[{n}:{n + c - 1}]"
def sr(n, c=1): return f"s{n}" if c == 1 else f"s[{n}:{n + c - 1}]"

class Alloc:
    def __init__(self, start=0, limit=256): self.n = start; self.limit = limit
    def __call__(self, c=1, align=None):
        al = align or (2 if c > 1 else 1)
        self.n = (self.n + al - 1) // al * al
        r = self.n; self.n += c
        assert self.n <= self.limit, "out of registers"
        return r

def fhex(x):
    import struct
    return "0x%08x" % struct.unpack("<I", struct.pack("<f", x))[0]

def srd(a, d, base, nbytes, off=0):
    if off:
        a(f"s_add_u32 s{d}, s{base}, {off}\ns_addc_u32 s{d+1}, s{base+1}, 0")
    else:
        a(f"s_mov_b32 s{d}, s{base}\ns_mov_b32 s{d+1}, s{base+1}")
    a(f"s_mov_b32 s{d+2}, {nbytes}\ns_mov_b32 s{d+3}, 0x20000")

def kernel_text(name, body):
    return f".globl {name}\n.p2align 8\n.type {name},@function\n{name}:\n{body}\n"

def kernel_desc(name, vgpr, accum, sgpr=102):
    return (f".p2align 6\n.amdhsa_kernel {name}\n  .amdhsa_next_free_vgpr {vgpr}\n  .amdhsa_next_free_sgpr {sgpr}\n"
            f"  .amdhsa_accum_offset {accum}\n  .amdhsa_group_segment_fixed_size 0\n  .amdhsa_kernarg_size 80\n"
            f"  .amdhsa_user_sgpr_count 2\n  .amdhsa_user_sgpr_kernarg_segment_ptr 1\n  .amdhsa_system_sgpr_workgroup_id_x 1\n"
            f"  .amdhsa_float_denorm_mode_32 3\n.end_amdhsa_kernel\n")
```

```python
from asmgen import *

Z1_OFF, Z1_SIZE = 0x0000000, 257 * 16384
WT_OFF, WT_SIZE = 0x0500000, 514 * 8192
Z2_STRIDE = 16512
Z2_OFF, Z2_SIZE = 0x0A00000, 256 * Z2_STRIDE + 1024
H_OFF, H_SIZE = 0x0F00000, 2048 * 2048
HN_OFF, HN_SIZE = 0x1400000, 2048 * 2048
HH_OFF, HH_SIZE = 0x1900000, 2048 * 3584 * 2
MF = "v_mfma_f32_16x16x32_bf16"

def mfma(d, a, b, first): return f"{MF} {vr(d,4)}, {vr(a,4)}, {vr(b,4)}, {'0' if first else vr(d,4)}"
def cvt(d, a, b, na=False, nb=False): return f"v_cvt_pk_bf16_f32 v{d}, {'-' if na else ''}v{a}, {'-' if nb else ''}v{b}"

def lane_ids(a, V):
    l, j, g = V(), V(), V()
    a(f"v_lshrrev_b32 v{g}, 6, v0\nv_and_b32 v{l}, 63, v0\nv_readfirstlane_b32 s3, v{g}")
    a(f"v_and_b32 v{j}, 15, v{l}\nv_lshrrev_b32 v{g}, 4, v{l}")
    return l, j, g

def sincos(a, idxf, step, n, tc, ts, ta):
    for i in range(n): a(f"v_mul_f32 v{ta+i}, v{idxf+i}, v{step}")
    for i in range(n): a(f"v_cos_f32 v{tc+i}, v{ta+i}")
    for i in range(n): a(f"v_sin_f32 v{ts+i}, v{ta+i}")

def twiddle(re, im, c, s, t, inverse=False):
    o = []
    for h in (0, 2): o.append(f"v_pk_mul_f32 {vr(t+h,2)}, {vr(re+h,2)}, {vr(s+h,2)}")
    for h in (0, 2): o.append(f"v_pk_mul_f32 {vr(re+h,2)}, {vr(re+h,2)}, {vr(c+h,2)}")
    for h in (0, 2):
        o.append(f"v_pk_fma_f32 {vr(re+h,2)}, {vr(im+h,2)}, {vr(s+h,2)}, {vr(re+h,2)}" + (" neg_lo:[1,0,0] neg_hi:[1,0,0]" if inverse else ""))
    for h in (0, 2):
        o.append(f"v_pk_fma_f32 {vr(im+h,2)}, {vr(im+h,2)}, {vr(c+h,2)}, {vr(t+h,2)}" + ("" if inverse else " neg_lo:[0,0,1] neg_hi:[0,0,1]"))
    return o

def row_stats(a, sa, qa, sb, qb, ra, rb, t):
    for r in (sa, qa, sb, qb): a(f"v_add_f32 v{r}, v{r}, v{r+1}")
    a(f"v_permlane16_swap_b32 v{sa}, v{qa}\nv_permlane16_swap_b32 v{sb}, v{qb}")
    a(f"v_add_f32 v{sa}, v{sa}, v{qa}\nv_add_f32 v{sb}, v{sb}, v{qb}")
    a(f"v_permlane32_swap_b32 v{sa}, v{sb}")
    a(f"v_add_f32 v{sa}, v{sa}, v{sb}")
    for k in (8, 4, 2, 1): a(f"v_add_f32 v{sa}, v{sa}, v{sa} row_ror:{k}")
    a(f"v_mul_f32 v{sa}, {fhex(1/1024)}, v{sa}")
    a(f"v_readlane_b32 s40, v{sa}, 0\nv_readlane_b32 s41, v{sa}, 16\nv_readlane_b32 s42, v{sa}, 32\nv_readlane_b32 s43, v{sa}, 48")
    a(f"v_mov_b32 v{t}, s41\nv_mov_b32 v{t+1}, s43")
    a(f"v_fma_f32 v{t}, -s40, s40, v{t}\nv_fma_f32 v{t+1}, -s42, s42, v{t+1}")
    a(f"v_max_f32 v{t}, 0, v{t}\nv_max_f32 v{t+1}, 0, v{t+1}")
    a(f"v_add_f32 v{t}, {fhex(1e-5)}, v{t}\nv_add_f32 v{t+1}, {fhex(1e-5)}, v{t+1}")
    a(f"v_rsq_f32 v{ra}, v{t}\nv_rsq_f32 v{rb}, v{t+1}")
    a(f"v_mul_f32 v{ra+1}, s40, v{ra}\nv_mul_f32 v{rb+1}, s42, v{rb}")

def norm(p, r): return f"v_pk_fma_f32 {vr(p,2)}, {vr(p,2)}, {vr(r,2)}, {vr(r,2)} op_sel:[0,0,1] op_sel_hi:[1,0,1] neg_lo:[0,0,1] neg_hi:[0,0,1]"

def gen_k1(name, hooks=None):
    a = Asm(); V = Alloc(1)
    a("s_load_dwordx4 s[4:7], s[0:1], 0\ns_load_dwordx2 s[8:9], s[0:1], 16\ns_load_dwordx2 s[10:11], s[0:1], 72")
    l, j, g = lane_ids(a, V)
    a(f"s_cmp_ge_u32 s2, 256\ns_cbranch_scc1 {name}_prep")
    a("s_and_b32 s20, s2, 7\ns_lshr_b32 s21, s2, 3")
    a("s_lshl_b32 s22, s20, 7\ns_lshl_b32 s23, s3, 5\ns_add_u32 s22, s22, s23\ns_add_u32 s22, s22, s21\ns_lshl_b32 s22, s22, 12")
    voff = V(); X = V(16); P = V(32)
    a(f"v_lshlrev_b32 v{voff}, 9, v{g}\nv_lshl_add_u32 v{voff}, v{j}, 2, v{voff}")
    a("s_waitcnt lgkmcnt(0)")
    srd(a, 12, 4, 2048 * 2048)
    for e in range(2):
        for i in range(8): a(f"buffer_load_dword v{X+8*e+i}, v{voff}, s[12:15], s22 offen offset:{e*2048+64*i}")
    nextra = hooks(a, V, "k1main") if hooks else 0
    srd(a, 16, 10, Z1_SIZE, Z1_OFF)
    pf = V(8); ta = V(8); tc = V(8); ts = V(8); step = V()
    C1 = [V(4) for _ in range(2)]; S1 = [V(4) for _ in range(2)]; N1 = [V(4) for _ in range(2)]
    C2 = [V(4) for _ in range(2)]; S2 = [V(4) for _ in range(2)]; X2 = [V(4) for _ in range(2)]
    TWc = [[V(4) for _ in range(2)] for _ in range(2)]; TWs = [[V(4) for _ in range(2)] for _ in range(2)]
    a(f"v_lshlrev_b32 v{step}, 3, v{g}\nv_cvt_f32_u32 v{pf}, v{step}")
    for i in range(1, 8): a(f"v_add_f32 v{pf+i}, 1.0, v{pf+i-1}")
    for T in range(2):
        a(f"v_lshrrev_b32 v{step}, 2, v{j}\nv_lshlrev_b32 v{step}, 3, v{step}\nv_and_or_b32 v{step}, v{j}, 3, v{step}")
        if T: a(f"v_or_b32 v{step}, 4, v{step}")
        a(f"v_cvt_f32_u32 v{step}, v{step}\nv_mul_f32 v{step}, {fhex(1/32)}, v{step}")
        sincos(a, pf, step, 8, tc, ts, ta)
        for k in range(4):
            a(cvt(C1[T]+k, tc+2*k, tc+2*k+1)); a(cvt(S1[T]+k, ts+2*k, ts+2*k+1)); a(cvt(N1[T]+k, ts+2*k, ts+2*k+1, True, True))
        for i in range(8): a(f"v_mul_f32 v{ta+i}, {fhex(1/32)}, v{ta+i}")
        for i in range(8): a(f"v_cos_f32 v{TWc[T][i&1]+(i>>1)}, v{ta+i}\nv_sin_f32 v{TWs[T][i&1]+(i>>1)}, v{ta+i}")
    for T in range(2):
        a(f"v_or_b32 v{step}, {16*T}, v{j}\nv_cvt_f32_u32 v{step}, v{step}\nv_mul_f32 v{step}, {fhex(1/32)}, v{step}")
        sincos(a, pf, step, 8, tc, ts, ta)
        for k in range(4):
            a(cvt(C2[T]+k, tc+2*k, tc+2*k+1)); a(cvt(S2[T]+k, ts+2*k, ts+2*k+1))
            src = tc if T else ts
            a(cvt(X2[T]+k, src+2*k, src+2*k+1, True, True))
    wa = V(); ra = V(4); so = V(); t0 = V(); t1 = V()
    a(f"v_bfe_u32 v{t0}, v{j}, 1, 2\nv_xor_b32 v{t0}, v{t0}, v{g}\nv_lshlrev_b32 v{t0}, 4, v{t0}\nv_lshl_add_u32 v{wa}, v{j}, 6, v{t0}")
    a(f"s_mul_i32 s24, s3, 2112\nv_add_u32 v{wa}, s24, v{wa}")
    a(f"v_bfe_u32 v{t0}, v{l}, 2, 2\nv_mul_u32_u24 v{ra}, 2112, v{t0}")
    a(f"v_lshrrev_b32 v{t0}, 1, v{g}\nv_lshl_add_u32 v{ra}, v{t0}, 6, v{ra}")
    a(f"v_and_b32 v{t0}, 1, v{g}\nv_lshl_add_u32 v{ra}, v{t0}, 5, v{ra}")
    a(f"v_and_b32 v{t0}, 3, v{l}\nv_lshl_add_u32 v{ra}, v{t0}, 3, v{ra}")
    a(f"s_lshl_b32 s24, s3, 9\nv_add_u32 v{ra}, s24, v{ra}")
    for n in range(1, 4): a(f"v_xor_b32 v{ra+n}, {16*n}, v{ra}")
    a("s_lshr_b32 s24, s21, 4\ns_lshl_b32 s24, s24, 7\ns_lshl_b32 s25, s20, 4\ns_add_u32 s24, s24, s25\ns_and_b32 s25, s21, 15\ns_add_u32 s24, s24, s25")
    a("s_bfe_u32 s25, s24, 0x20002\ns_lshl_b32 s24, s24, 6")
    a(f"s_lshl_b32 s26, s3, 8\ns_cmp_ge_u32 s3, 2\ns_cbranch_scc1 {name}_mir")
    a(f"v_add_u32 v{t0}, s26, v{l}\nv_and_b32 v{t1}, 1, v{t0}")
    a("s_mov_b32 s28, 0\ns_mov_b32 s29, 0x80000\ns_mov_b32 s30, 0x100000\ns_mov_b32 s31, 0x180000")
    a(f"s_branch {name}_adr\n{name}_mir:")
    a(f"s_sub_u32 s26, {1024-192}, s26\nv_sub_u32 v{t0}, s26, v{l}\nv_and_b32 v{t1}, 1, v{t0}\nv_xor_b32 v{t1}, 3, v{t1}")
    a("s_mov_b32 s31, 0\ns_mov_b32 s30, 0x80000\ns_mov_b32 s29, 0x100000\ns_mov_b32 s28, 0x180000")
    a(f"{name}_adr:")
    a(f"v_lshrrev_b32 v{t0}, 1, v{t0}\nv_xor_b32 v{t1}, s25, v{t1}\nv_lshlrev_b32 v{so}, 14, v{t0}\nv_lshl_add_u32 v{so}, v{t1}, 4, v{so}\nv_add_u32 v{so}, s24, v{so}")
    st = V(8); rn = V(4); tt = V(4)
    for e in range(2):
        for i in range(8):
            a(f"s_waitcnt vmcnt({15-8*e-i+nextra})")
            a(f"v_lshlrev_b32 v{P+16*e+2*i}, 16, v{X+8*e+i}\nv_and_b32 v{P+16*e+2*i+1}, 0xffff0000, v{X+8*e+i}")
            p = vr(P+16*e+2*i, 2); s_ = vr(st+4*e, 2); q_ = vr(st+4*e+2, 2)
            if i == 0: a(f"v_pk_mul_f32 {q_}, {p}, {p}")
            elif i == 1: a(f"v_pk_add_f32 {s_}, {p}, {vr(P+16*e,2)}\nv_pk_fma_f32 {q_}, {p}, {p}, {q_}")
            else: a(f"v_pk_add_f32 {s_}, {p}, {s_}\nv_pk_fma_f32 {q_}, {p}, {p}, {q_}")
    row_stats(a, st, st+2, st+4, st+6, rn, rn+2, tt)
    A1 = [[X + 8*e + 4*tq for tq in range(2)] for e in range(2)]
    for e in range(2):
        for i in range(8): a(norm(P+16*e+2*i, rn+2*e))
        for tq in range(2):
            for k in range(4): a(cvt(A1[e][tq]+k, P+16*e+4*k+tq, P+16*e+4*k+2+tq))
    D = pf
    D1 = lambda tq, T, part: D + ((T*2+tq)*2+part)*4
    for T in range(2):
        for tq in range(2): a(mfma(D1(tq,T,0), A1[0][tq], C1[T], True)); a(mfma(D1(tq,T,1), A1[1][tq], C1[T], True))
        for tq in range(2): a(mfma(D1(tq,T,0), A1[1][tq], S1[T], False)); a(mfma(D1(tq,T,1), A1[0][tq], N1[T], False))
    A2 = [[X + 8*T + 4*p for p in range(2)] for T in range(2)]
    E = P
    D2 = lambda T1, T2, part: E + ((T2*2+part)*2+T1)*4
    for T in range(2):
        for tq in range(2): a(twiddle(D1(tq,T,0), D1(tq,T,1), TWc[T][tq], TWs[T][tq], tt))
        for part in range(2):
            for r in range(4): a(cvt(A2[T][part]+r, D1(0,T,part)+r, D1(1,T,part)+r))
        for T2 in range(2):
            a(mfma(D2(T,T2,0), A2[T][0], C2[T2], True))
            a(mfma(D2(T,T2,1), A2[T][0] if T2 else A2[T][1], S2[T2] if T2 else C2[T2], True))
        for T2 in range(2):
            a(mfma(D2(T,T2,0), A2[T][1], S2[T2], False))
            a(mfma(D2(T,T2,1), A2[T][1] if T2 else A2[T][0], X2[T2], False))
    for T2 in range(2):
        for part in range(2):
            o = D + (T2*2+part)*4; s_ = D2(0,T2,part)
            for k in range(4): a(cvt(o+k, s_+2*k, s_+2*k+1))
            a(f"ds_write_b128 v{wa}, {vr(o,4)} offset:{part*8448+T2*1024}")
    a("s_waitcnt lgkmcnt(0)\ns_barrier")
    for n in range(4):
        a(f"ds_read_b64_tr_b16 {vr(X+4*n,2)}, v{ra+n} offset:{n*128}\nds_read_b64_tr_b16 {vr(X+4*n+2,2)}, v{ra+n} offset:{n*128+8448}")
    for n in range(4):
        a(f"s_waitcnt lgkmcnt({6-2*n})\nbuffer_store_dwordx4 {vr(X+4*n,4)}, v{so}, s[16:19], s{28+n} offen")
    a(f"s_bitcmp1_b32 s3, 0\ns_cbranch_scc1 {name}_end")
    a(f"v_mov_b32 v{D}, v{X}\nv_mov_b32 v{D+1}, v{X+1}\nv_xor_b32 v{D+2}, 0x80008000, v{X+2}\nv_xor_b32 v{D+3}, 0x80008000, v{X+3}\nv_xor_b32 v{t0}, 48, v{so}")
    a(f"s_mov_b64 exec, 1\nbuffer_store_dwordx4 {vr(D,4)}, v{t0}, s[16:19], s28 offen")
    a("s_endpgm")
    nv_main = V.n
    V = Alloc(g + 1)
    a(f"{name}_prep:\ns_cmp_ge_u32 s2, 512\ns_cbranch_scc1 {name}_end\ns_waitcnt lgkmcnt(0)")
    srd(a, 12, 6, 2048 * 1026); srd(a, 16, 8, 2048 * 1026); srd(a, 20, 10, WT_SIZE, WT_OFF)
    jt = V(); ad = V(4); WS = V(8); t0 = V(); t1 = V()
    a(f"s_cmp_ge_u32 s2, 264\ns_cbranch_scc1 {name}_nosym")
    a("s_sub_u32 s24, s2, 256\ns_lshr_b32 s44, s24, 2\ns_and_b32 s24, s24, 3\ns_lshl_b32 s24, s24, 8\ns_lshl_b32 s26, s44, 10")
    a(f"v_add_u32 v{jt}, s24, v0")
    a(f"v_mov_b32 v{ad}, v{jt}\nv_add_u32 v{ad+1}, 1024, v{jt}\nv_sub_u32 v{ad+2}, 2048, v{jt}\nv_and_b32 v{ad+2}, 2047, v{ad+2}\nv_sub_u32 v{ad+3}, 1024, v{jt}")
    for k in range(4): a(f"v_mul_u32_u24 v{ad+k}, 1026, v{ad+k}")
    for k in range(4):
        for arr in range(2): a(f"buffer_load_ushort v{WS+2*k+arr}, v{ad+k}, s[{12+4*arr}:{15+4*arr}], s26 offen")
    a(f"{name}_nosym:")
    a("s_sub_u32 s24, s2, 256\ns_and_b32 s25, s24, 15\ns_lshr_b32 s24, s24, 4")
    a("s_lshr_b32 s26, s24, 3\ns_and_b32 s27, s24, 7")
    a("s_lshl_b32 s28, s26, 4\ns_lshl_b32 s29, s27, 7\ns_add_u32 s28, s28, s29\ns_mul_i32 s28, s28, 1026")
    a("s_lshl_b32 s29, s25, 6\ns_add_u32 s28, s28, s29\ns_lshl_b32 s29, s3, 4\ns_add_u32 s28, s28, s29")
    vo = V(); W = V(16); O = V(16, 4); so2 = V(); kp = V()
    a(f"v_mul_u32_u24 v{vo}, 1026, v{j}\nv_lshl_add_u32 v{vo}, v{g}, 2, v{vo}\nv_add_u32 v{vo}, s28, v{vo}")
    for r in range(4):
        for hf in range(2): a(f"s_mov_b32 s{32+2*r+hf}, {(32*r+1024*hf)*1026}")
    for r in range(4):
        for hf in range(2):
            for arr in range(2): a(f"buffer_load_dword v{W+4*r+2*hf+arr}, v{vo}, s[{12+4*arr}:{15+4*arr}], s{32+2*r+hf} offen")
    if hooks: hooks(a, V, "k1prep")
    a(f"s_lshl_b32 s28, s25, 5\ns_lshl_b32 s29, s3, 3\ns_add_u32 s28, s28, s29\nv_lshl_add_u32 v{kp}, v{g}, 1, s28")
    a("s_lshr_b32 s28, s24, 2\ns_lshl_b32 s28, s28, 11\ns_and_b32 s29, s24, 3\ns_lshl_b32 s29, s29, 8\ns_add_u32 s28, s28, s29")
    a(f"v_lshlrev_b32 v{so2}, 13, v{kp}\nv_lshl_add_u32 v{so2}, v{j}, 4, v{so2}\nv_add_u32 v{so2}, s28, v{so2}")
    a("s_mov_b32 s30, 0x05040100\ns_mov_b32 s31, 0x07060302\ns_mov_b32 s29, 8192")
    a(f"v_cmp_ne_u32 vcc, 0, v{kp}")
    a("s_waitcnt vmcnt(0)")
    for e in range(2):
        for r in range(4):
            for hf in range(2): a(f"v_perm_b32 v{O+8*e+2*r+hf}, v{W+4*r+2*hf+1}, v{W+4*r+2*hf}, s{30+e}")
    for h in range(2): a(f"buffer_store_dwordx4 {vr(O+8+4*h,4)}, v{so2}, s[20:23], s29 offen offset:{1024*h}")
    a("s_and_b64 exec, exec, vcc")
    for h in range(2): a(f"buffer_store_dwordx4 {vr(O+4*h,4)}, v{so2}, s[20:23], 0 offen offset:{1024*h}")
    a(f"s_cmp_ge_u32 s2, 264\ns_cbranch_scc1 {name}_end\ns_mov_b64 exec, -1")
    W = WS; so2 = ad; O = V(2)
    a(f"v_bfe_u32 v{t0}, v{jt}, 4, 1\nv_lshlrev_b32 v{so2}, 12, v{t0}\nv_bfe_u32 v{t0}, v{jt}, 9, 1\nv_lshl_add_u32 v{so2}, v{t0}, 11, v{so2}")
    a(f"v_bfe_u32 v{t0}, v{jt}, 6, 1\nv_lshl_add_u32 v{so2}, v{t0}, 10, v{so2}\nv_bfe_u32 v{t0}, v{jt}, 7, 2\nv_lshl_add_u32 v{so2}, v{t0}, 8, v{so2}")
    a(f"v_and_b32 v{t0}, 15, v{jt}\nv_lshl_add_u32 v{so2}, v{t0}, 4, v{so2}\nv_bfe_u32 v{t0}, v{jt}, 5, 1\nv_lshl_add_u32 v{so2}, v{t0}, 3, v{so2}")
    a("s_lshl_b32 s26, s44, 22")
    for k in range(8): a(f"v_lshlrev_b32 v{W+k}, 16, v{W+k}")
    for hf in range(2):
        a(f"v_add_f32 v{t0}, v{W+2*hf}, v{W+4+2*hf}\nv_sub_f32 v{t1}, v{W+2*hf+1}, v{W+4+2*hf+1}")
        a(f"v_mul_f32 v{t0}, 0.5, v{t0}\nv_mul_f32 v{t1}, 0.5, v{t1}"); a(cvt(O+hf, t0, t1))
    a(f"buffer_store_dwordx2 {vr(O,2)}, v{so2}, s[20:23], s26 offen")
    a(f"{name}_end:\ns_endpgm")
    return a.finish(), max(nv_main, V.n), 16896

def dft_block(a, B, colf, slotf, tc, ts, ta, step, order):
    for T in range(2):
        colf(T)
        a(f"v_cvt_f32_u32 v{step}, v{step}\nv_mul_f32 v{step}, {fhex(1/32)}, v{step}")
        sincos(a, slotf, step, 8, tc, ts, ta)
        for t in range(2):
            for x, w in enumerate(order):
                src = tc if w == "C" else ts
                for k in range(2): a(cvt(B[T][t]+2*x+k, src+4*t+2*k, src+4*t+2*k+1, w == "N", w == "N"))

def gen_k2(name, hooks=None):
    a = Asm(); V = Alloc(1)
    a("s_load_dwordx2 s[10:11], s[0:1], 72")
    l, j, g = lane_ids(a, V)
    a(f"s_cmp_gt_u32 s2, 256\ns_cbranch_scc1 {name}_end")
    a("s_and_b32 s20, s2, 7\ns_lshl_b32 s20, s20, 5\ns_lshr_b32 s21, s2, 3\ns_add_u32 s20, s20, s21\ns_cmp_eq_u32 s2, 256\ns_cselect_b32 s20, 256, s20")
    vo = V(); W = V(32, 4)
    a(f"s_lshl_b32 s21, s3, 12\ns_mov_b32 m0, s21\ns_lshl_b32 s22, s20, 14\ns_add_u32 s22, s22, s21\nv_lshlrev_b32 v{vo}, 4, v{l}")
    a("s_lshr_b32 s23, s3, 1\ns_xor_b32 s23, s23, s3\ns_and_b32 s23, s23, 1\ns_lshl_b32 s24, s20, 1\ns_add_u32 s23, s23, s24\ns_lshl_b32 s23, s23, 13\ns_add_u32 s24, s23, 4096")
    a("s_waitcnt lgkmcnt(0)")
    srd(a, 12, 10, Z1_SIZE, Z1_OFF); srd(a, 16, 10, WT_SIZE, WT_OFF)
    for n in range(4): a(f"buffer_load_dwordx4 v{vo}, s[12:15], s22 offen offset:{1024*n} lds")
    for n in range(8): a(f"buffer_load_dwordx4 {vr(W+4*n,4)}, v{vo}, s[16:19], s{23+n//4} offen offset:{1024*(n%4)}")
    nextra = hooks(a, V, "k2") if hooks else 0
    srd(a, 12, 10, Z2_SIZE, Z2_OFF)
    sf = V(8); tc = V(8); ta = V(8); ts = V(8); step = V(); t0 = V()
    B = [[V(6) for _ in range(2)] for _ in range(2)]; BR = [[V(6) for _ in range(2)] for _ in range(2)]
    TWc = [[V(4) for _ in range(2)] for _ in range(2)]; TWs = [[V(4) for _ in range(2)] for _ in range(2)]
    MC = V(16); MS = V(16)
    a(f"v_lshlrev_b32 v{step}, 2, v{g}\nv_cvt_f32_u32 v{sf}, v{step}")
    for i in range(1, 4): a(f"v_add_f32 v{sf+i}, 1.0, v{sf+i-1}")
    for i in range(4): a(f"v_add_f32 v{sf+4+i}, {fhex(16.0)}, v{sf+i}")
    dft_block(a, B, lambda T: a(f"v_or_b32 v{step}, {16*T}, v{j}"), sf, tc, ts, ta, step, "NCS")
    ra = V(); xa = V(); pa = V(); so = V()
    a(f"v_bfe_u32 v{t0}, v{l}, 2, 2\nv_xor_b32 v{t0}, s3, v{t0}\nv_lshlrev_b32 v{t0}, 4, v{t0}\nv_lshl_add_u32 v{ra}, v{l}, 6, v{t0}")
    for T in range(2):
        a(f"v_or_b32 v{step}, {16*T}, v{j}\nv_cvt_f32_u32 v{step}, v{step}\nv_mul_f32 v{step}, {fhex(1/1024)}, v{step}")
        for i in range(8): a(f"v_mul_f32 v{ta+i}, v{sf+i}, v{step}")
        for i in range(8): a(f"v_cos_f32 v{TWc[T][i>>2]+(i&3)}, v{ta+i}\nv_sin_f32 v{TWs[T][i>>2]+(i&3)}, v{ta+i}")
    a(f"s_cmp_ge_u32 s3, 2\ns_cselect_b32 s25, {fhex(-1.0)}, {fhex(1.0)}\ns_mov_b32 s26, {fhex(1/64)}")
    for T in range(2):
        a(f"v_or_b32 v{step}, {16*T}, v{j}\nv_cvt_f32_u32 v{step}, v{step}\nv_mul_f32 v{step}, {fhex(1/2048)}, v{step}")
        for i in range(8): a(f"v_fma_f32 v{ta+i}, v{sf+i}, s26, v{step}")
        for i in range(8): a(f"v_cos_f32 v{tc+i}, v{ta+i}\nv_sin_f32 v{ts+i}, v{ta+i}")
        for i in range(8): a(f"v_mul_f32 v{MC+8*T+i}, s25, v{tc+i}\nv_mul_f32_e64 v{MS+8*T+i}, s25, -v{ts+i}")
    a("s_bfe_u32 s27, s20, 0x20001")
    def colr(T): a(f"v_xor_b32 v{step}, s27, v{j}\nv_or_b32 v{step}, {16*T}, v{step}")
    dft_block(a, BR, colr, sf, tc, ts, ta, step, "NCS")
    a(f"s_lshl_b32 s28, s3, 13\ns_add_u32 s28, s28, 16384\nv_add_u32 v{xa}, s28, v{vo}")
    a(f"s_xor_b32 s28, s3, 3\ns_lshl_b32 s28, s28, 13\ns_add_u32 s28, s28, 16384\nv_add_u32 v{pa}, s28, v{vo}")
    a(f"v_lshl_add_u32 v{t0}, v{j}, 3, v{g}\nv_mul_u32_u24 v{so}, {Z2_STRIDE}, v{t0}\ns_lshl_b32 s28, s20, 2\ns_add_u32 s28, s28, s3\ns_lshl_b32 s28, s28, 4\nv_add_u32 v{so}, s28, v{so}")
    for Tq in range(2):
        for Tp in range(2): a(f"s_mov_b32 s{32+2*Tq+Tp}, {(128*Tq+4*Tp)*Z2_STRIDE}")
    X = sf; D = V(32); E = V(32); tt = ta
    a(f"s_waitcnt vmcnt({8+nextra})\ns_barrier")
    for n in range(4): a(f"ds_read_b128 {vr(X+4*n,4)}, v{ra} offset:{4096*n}")
    acc = lambda base, x, y, part: base + ((x*2+y)*2+part)*4
    def stage(dst, data, cst, data_is_a, waits=None):
        o = []
        for x in range(2):
            for t in range(2):
                if waits: o.append(f"s_waitcnt lgkmcnt({3-2*x-t})")
                for y in range(2):
                    for part in range(2):
                        c = cst[y][t] + (2 if part == 0 else 0)
                        o.append(mfma(dst(x,y,part), data(x,t), c, t == 0) if data_is_a else mfma(dst(x,y,part), c, data(x,t), t == 0))
        return o
    def pack(dst, re, im):
        return [cvt(dst, re, re+1), cvt(dst+1, re+2, re+3), cvt(dst+2, im, im+1), cvt(dst+3, im+2, im+3)]
    D1 = lambda Tq, T1, part: acc(D, Tq, T1, part)
    a(stage(D1, lambda x, t: X+4*(2*x+t), B, True, waits=True))
    for T1 in range(2):
        for Tq in range(2):
            a(twiddle(D1(Tq,T1,0), D1(Tq,T1,1), TWc[T1][Tq], TWs[T1][Tq], tt)); a(pack(X+4*(2*T1+Tq), D1(Tq,T1,0), D1(Tq,T1,1)))
    D2 = lambda T1, T2, part: acc(E, T1, T2, part)
    a(stage(D2, lambda x, t: X+4*(2*x+t), B, False))
    for n in range(8): a(f"ds_write_b128 v{xa}, {vr(E+4*n,4)} offset:{1024*n}")
    u = ts
    a(f"s_waitcnt vmcnt({nextra})")
    for n in range(8):
        e0 = 2*n; w = W + 4*n
        for k in range(2):
            a(f"v_lshlrev_b32 v{u+k}, 16, v{w+2*k}\nv_and_b32 v{u+2+k}, 0xffff0000, v{w+2*k}\nv_lshlrev_b32 v{u+4+k}, 16, v{w+2*k+1}\nv_and_b32 v{u+6+k}, 0xffff0000, v{w+2*k+1}")
        a(f"v_pk_add_f32 {vr(w,2)}, {vr(u,2)}, {vr(u+4,2)}\nv_pk_add_f32 {vr(w+2,2)}, {vr(u+2,2)}, {vr(u+6,2)}")
        a(f"v_pk_add_f32 {vr(u,2)}, {vr(u,2)}, {vr(u+4,2)} neg_lo:[0,1] neg_hi:[0,1]\nv_pk_add_f32 {vr(u+2,2)}, {vr(u+2,2)}, {vr(u+6,2)} neg_lo:[0,1] neg_hi:[0,1]")
        a(f"v_pk_fma_f32 {vr(w,2)}, {vr(u,2)}, {vr(MS+e0,2)}, {vr(w,2)}\nv_pk_fma_f32 {vr(w+2,2)}, {vr(u+2,2)}, {vr(MS+e0,2)}, {vr(w+2,2)}")
        a(f"v_pk_mul_f32 {vr(MS+e0,2)}, {vr(u,2)}, {vr(MC+e0,2)}\nv_pk_mul_f32 {vr(MC+e0,2)}, {vr(u+2,2)}, {vr(MC+e0,2)}")
    a("s_waitcnt lgkmcnt(0)\ns_barrier")
    for n in range(8): a(f"ds_read_b128 {vr(D+4*n,4)}, v{pa} offset:{1024*n}")
    for T1 in range(2):
        for T2 in range(2):
            n = T1*2+T2
            a(f"s_waitcnt lgkmcnt({6-2*n})")
            for h in (0, 2):
                e0 = 4*n + h; ar_, ai, br, bi = vr(W+2*e0,2), vr(W+2*e0+2,2), vr(MS+e0,2), vr(MC+e0,2)
                wr, wi = vr(D2(T1,T2,0)+h,2), vr(D2(T1,T2,1)+h,2)
                orr, oi = vr(acc(D,T1,T2,0)+h,2), vr(acc(D,T1,T2,1)+h,2)
                x, y = vr(tt+h,2), vr(tt+4+h,2)
                a(f"v_pk_mul_f32 {x}, {ar_}, {wr}\nv_pk_mul_f32 {y}, {ar_}, {wi} neg_lo:[1,0] neg_hi:[1,0]")
                a(f"v_pk_fma_f32 {x}, {ai}, {wi}, {x} neg_lo:[1,0,0] neg_hi:[1,0,0]\nv_pk_fma_f32 {y}, {ai}, {wr}, {y} neg_lo:[1,0,0] neg_hi:[1,0,0]")
                a(f"v_pk_fma_f32 {x}, {br}, {oi}, {x} neg_lo:[1,0,0] neg_hi:[1,0,0]\nv_pk_fma_f32 {y}, {br}, {orr}, {y} neg_lo:[1,0,0] neg_hi:[1,0,0]")
                a(f"v_pk_fma_f32 {x}, {bi}, {orr}, {x} neg_lo:[1,0,0] neg_hi:[1,0,0]\nv_pk_fma_f32 {y}, {bi}, {oi}, {y}")
            a(pack(X+4*n, tt, tt+4))
    DA = lambda T1, Tq, part: acc(D, T1, Tq, part)
    a(stage(DA, lambda x, t: X+4*(2*x+t), B, True))
    for Tq in range(2):
        for T1 in range(2):
            a(twiddle(DA(T1,Tq,0), DA(T1,Tq,1), TWc[Tq][T1], TWs[Tq][T1], tt)); a(pack(X+4*(2*Tq+T1), DA(T1,Tq,0), DA(T1,Tq,1)))
    DB = lambda Tq, Tp, part: acc(E, Tq, Tp, part)
    a(stage(DB, lambda x, t: X+4*(2*x+t), BR, False))
    for Tq in range(2):
        for Tp in range(2):
            o = D + 4*(2*Tq+Tp)
            for r in range(4): a(cvt(o+r, DB(Tq,Tp,0)+r, DB(Tq,Tp,1)+r, False, True))
            a(f"buffer_store_dwordx4 {vr(o,4)}, v{so}, s[12:15], s{32+2*Tq+Tp} offen")
    a(f"{name}_end:\ns_endpgm")
    return a.finish(), V.n, 16384 + 32768

def gen_k3(name, hooks=None):
    a = Asm(); V = Alloc(1)
    a("s_load_dwordx2 s[4:5], s[0:1], 0\ns_load_dwordx2 s[10:11], s[0:1], 72")
    l, j, g = lane_ids(a, V)
    a(f"s_cmp_ge_u32 s2, 256\ns_cbranch_scc1 {name}_end")
    a("s_and_b32 s20, s2, 7\ns_lshr_b32 s21, s2, 3")
    a("s_lshl_b32 s22, s20, 7\ns_lshl_b32 s23, s3, 5\ns_add_u32 s22, s22, s23\ns_add_u32 s22, s22, s21\ns_lshl_b32 s22, s22, 12")
    vo = V(); xo = V(); XR = V(16, 4)
    a(f"s_lshl_b32 s23, s3, 12\ns_mov_b32 m0, s23\ns_mul_i32 s24, s2, {Z2_STRIDE}\ns_add_u32 s25, s24, 16384\ns_add_u32 s24, s24, s23\nv_lshlrev_b32 v{vo}, 4, v{l}")
    a(f"v_lshlrev_b32 v{xo}, 6, v{j}\nv_lshl_add_u32 v{xo}, v{g}, 4, v{xo}")
    a("s_waitcnt lgkmcnt(0)")
    srd(a, 12, 10, Z2_SIZE, Z2_OFF); srd(a, 16, 4, 2048 * 2048)
    for n in range(4): a(f"buffer_load_dwordx4 v{vo}, s[12:15], s24 offen offset:{1024*n} lds")
    a(f"s_mov_b32 m0, 16384\ns_mov_b64 exec, 15\nbuffer_load_dwordx4 v{vo}, s[12:15], s25 offen lds\ns_mov_b64 exec, -1")
    for n in range(4): a(f"buffer_load_dwordx4 {vr(XR+4*n,4)}, v{xo}, s[16:19], s22 offen offset:{1024*n}")
    nextra = hooks(a, V, "k3") if hooks else 0
    srd(a, 12, 10, H_SIZE, H_OFF); srd(a, 16, 10, HN_SIZE, HN_OFF)
    sf = V(8); kf = V(8); ta = V(8); tc = V(8); ts = V(8); step = V(); t0 = V(); t1 = V(); sg = V()
    B1 = [[[V(4) for _ in range(2)] for _ in range(2)] for _ in range(2)]
    B2 = [[V(6) for _ in range(2)] for _ in range(2)]
    TWc = [[V(4) for _ in range(2)] for _ in range(2)]; TWs = [[V(4) for _ in range(2)] for _ in range(2)]
    a(f"v_lshlrev_b32 v{step}, 2, v{g}\nv_cvt_f32_u32 v{sf}, v{step}")
    for i in range(1, 4): a(f"v_add_f32 v{sf+i}, 1.0, v{sf+i-1}")
    for i in range(4): a(f"v_add_f32 v{sf+4+i}, {fhex(16.0)}, v{sf+i}")
    a(f"v_and_b32 v{t0}, 1, v{g}\nv_cvt_f32_u32 v{t1}, v{t0}\nv_fma_f32 v{sg}, v{t1}, -2.0, 1.0\nv_mul_f32 v{t1}, {fhex(31.0)}, v{t1}")
    a(f"v_lshrrev_b32 v{t0}, 1, v{g}\nv_lshlrev_b32 v{t0}, 2, v{t0}\nv_cvt_f32_u32 v{kf}, v{t0}\nv_fma_f32 v{kf}, v{kf}, v{sg}, v{t1}")
    for i in range(1, 4): a(f"v_add_f32 v{kf+i}, v{kf+i-1}, v{sg}")
    a(f"v_mul_f32 v{t1}, {fhex(8.0)}, v{sg}")
    for i in range(4): a(f"v_add_f32 v{kf+4+i}, v{kf+i}, v{t1}")
    a(f"s_mov_b32 s26, {fhex(2.0**-21)}")
    for T in range(2):
        a(f"v_lshrrev_b32 v{step}, 2, v{j}\nv_lshlrev_b32 v{step}, 3, v{step}\nv_and_or_b32 v{step}, v{j}, 3, v{step}")
        if T: a(f"v_or_b32 v{step}, 4, v{step}")
        a(f"v_cvt_f32_u32 v{step}, v{step}\nv_mul_f32 v{step}, {fhex(1/32)}, v{step}")
        sincos(a, kf, step, 8, tc, ts, ta)
        for i in range(8):
            a(f"v_mul_f32 v{t0}, v{sg}, v{ts+i}\nv_mul_f32 v{t1}, v{sg}, v{tc+i}")
            a(cvt(B1[T][i>>2][0]+(i&3), tc+i, t0, False, True)); a(cvt(B1[T][i>>2][1]+(i&3), ts+i, t1))
        a(f"v_mul_f32 v{step}, {fhex(1/32)}, v{step}")
        sincos(a, sf, step, 8, tc, ts, ta)
        for i in range(8): a(f"v_mul_f32 v{TWc[T][i>>2]+(i&3)}, s26, v{tc+i}\nv_mul_f32 v{TWs[T][i>>2]+(i&3)}, s26, v{ts+i}")
    dft_block(a, B2, lambda T: a(f"v_or_b32 v{step}, {16*T}, v{j}"), sf, tc, ts, ta, step, "SCN")
    ra = V(2); wa = V(); so = V()
    a(f"v_and_b32 v{t1}, 1, v{g}\nv_cmp_eq_u32 vcc, 1, v{t1}\nv_lshrrev_b32 v{sg}, 1, v{g}\nv_lshlrev_b32 v{sg}, 7, v{sg}")
    for Tk in range(2):
        a(f"v_add_u32 v{t0}, {16*Tk}, v{j}\nv_sub_u32 v{step}, 32, v{t0}\nv_cndmask_b32 v{t0}, v{t0}, v{step}, vcc\nv_add_u32 v{t0}, v{t0}, v{sg}")
        a(f"v_lshrrev_b32 v{step}, 1, v{t0}\nv_lshlrev_b32 v{ra+Tk}, 6, v{step}")
        a(f"v_and_b32 v{step}, 1, v{t0}\nv_mul_u32_u24 v{ta}, 3, v{t1}\nv_xor_b32 v{step}, v{step}, v{ta}\nv_lshl_add_u32 v{ra+Tk}, v{step}, 4, v{ra+Tk}")
        a(f"v_bfe_u32 v{step}, v{t0}, 2, 2\nv_xor_b32 v{step}, s3, v{step}\nv_lshl_add_u32 v{ra+Tk}, v{step}, 2, v{ra+Tk}")
    HNL = 17408
    a(f"s_lshl_b32 s27, s3, 1\nv_and_b32 v{t0}, 7, v{j}\nv_xor_b32 v{t0}, s27, v{t0}\nv_lshlrev_b32 v{t0}, 4, v{t0}")
    a(f"v_lshl_add_u32 v{t0}, v{g}, 7, v{t0}\nv_lshl_add_u32 v{wa}, v{j}, 9, v{t0}")
    sox = V(4)
    a(f"v_lshrrev_b32 v{t0}, 5, v{l}\nv_and_b32 v{t1}, 7, v{l}\nv_xor_b32 v{t1}, v{t1}, v{t0}\nv_lshlrev_b32 v{so}, 4, v{t1}")
    a(f"v_bfe_u32 v{t1}, v{l}, 3, 2\nv_lshl_add_u32 v{so}, v{t1}, 8, v{so}\nv_lshl_add_u32 v{so}, v{t0}, 10, v{so}")
    for n in range(4): a(f"v_xor_b32 v{sox+n}, {32*n}, v{so}")
    a("s_lshl_b32 s28, s20, 4\ns_lshr_b32 s29, s21, 1\ns_add_u32 s28, s28, s29\ns_lshl_b32 s28, s28, 15\ns_and_b32 s29, s21, 1\ns_lshl_b32 s29, s29, 7\ns_add_u32 s28, s28, s29")
    a("s_lshl_b32 s29, s3, 13\ns_add_u32 s28, s28, s29\ns_add_u32 s29, s28, 4096")
    a(f"v_add_u32 v{vo}, s23, v{vo}")
    X = sf; D = V(32); E = V(32); tt = ta
    a(f"s_waitcnt vmcnt({4+nextra})\ns_barrier")
    for Tk in range(2):
        for m in (0, 1, 2, 3, 8, 9, 10, 11): a(f"ds_read_b32 v{X+8*Tk+(m&3)+4*(m>>3)}, v{ra+Tk} offset:{1024*m}")
    acc = lambda base, x, y, part: base + ((x*2+y)*2+part)*4
    D1 = lambda Tk, T1, part: acc(D, Tk, T1, part)
    for Tk in range(2):
        for t in range(2):
            a(f"s_waitcnt lgkmcnt({12-8*Tk-4*t})")
            for T1 in range(2):
                for part in range(2): a(mfma(D1(Tk,T1,part), X+8*Tk+4*t, B1[T1][t][part], t == 0))
    D2 = lambda T1, T2, part: E + ((part*2+T2)*2+T1)*4
    U = X
    for T1 in range(2):
        for Tk in range(2):
            re, im = D1(Tk,T1,0), D1(Tk,T1,1); o = U+4*(2*T1+Tk)
            a(twiddle(re, im, TWc[T1][Tk], TWs[T1][Tk], tt, inverse=True))
            a([cvt(o, re, re+1), cvt(o+1, re+2, re+3), cvt(o+2, im, im+1), cvt(o+3, im+2, im+3)])
        for Tk in range(2):
            for T2 in range(2):
                for part in range(2): a(mfma(D2(T1,T2,part), U+4*(2*T1+Tk), B2[T2][Tk] + (2 if part == 0 else 0), Tk == 0))
    a(f"s_waitcnt vmcnt({nextra})")
    for k in range(16): a(f"v_lshlrev_b32 v{D+2*k}, 16, v{XR+k}\nv_and_b32 v{D+2*k+1}, 0xffff0000, v{XR+k}")
    st = tc; rn = ts
    for k in range(16):
        e = k // 8; p = vr(E+2*k, 2); s_ = vr(st+4*e, 2); q_ = vr(st+4*e+2, 2)
        a(f"v_pk_add_f32 {p}, {p}, {vr(D+2*k,2)}")
        if k % 8 == 0: a(f"v_pk_mul_f32 {q_}, {p}, {p}")
        elif k % 8 == 1: a(f"v_pk_add_f32 {s_}, {p}, {vr(E+2*k-2,2)}\nv_pk_fma_f32 {q_}, {p}, {p}, {q_}")
        else: a(f"v_pk_add_f32 {s_}, {p}, {s_}\nv_pk_fma_f32 {q_}, {p}, {p}, {q_}")
    for n in range(4):
        for k in range(4): a(cvt(XR+4*n+k, E+8*n+2*k, E+8*n+2*k+1))
        a(f"buffer_store_dwordx4 {vr(XR+4*n,4)}, v{xo}, s[12:15], s22 offen offset:{1024*n}")
    row_stats(a, st, st+2, st+4, st+6, rn, rn+2, tt)
    a(f"v_xor_b32 v{t0}, 16, v{wa}")
    for n in range(4):
        e, T2 = n >> 1, n & 1
        for k in range(4): a(norm(E+8*n+2*k, rn+2*e))
        for k in range(4): a(cvt(X+4*n+k, E+8*n+2*k, E+8*n+2*k+1))
        a(f"ds_write_b128 v{t0 if e else wa}, {vr(X+4*n,4)} offset:{HNL+8192*T2}")
    a("s_waitcnt lgkmcnt(0)\ns_barrier")
    for n in range(4): a(f"ds_read_b128 {vr(D+4*n,4)}, v{vo} offset:{HNL+1024*n}")
    for n in range(4): a(f"s_waitcnt lgkmcnt({3-n})\nbuffer_store_dwordx4 {vr(D+4*n,4)}, v{sox+n}, s[16:19], s{28+n//2} offen offset:{2048*(n&1)}")
    a(f"{name}_end:\ns_endpgm")
    return a.finish(), V.n, HNL + 16384
```

```python
from asmgen import *
from gen_fft import MF, cvt, HN_OFF, HN_SIZE, HH_OFF, HH_SIZE, H_OFF, H_SIZE

def gen_k4(name, hooks=None):
    a = Asm()
    acc = lambda t, mat, m: ((t*2+mat)*4+m)*4
    V = Alloc(224)
    tid, l, vA, vB, vX = V(), V(), V(), V(), V()
    vD = V(7); t0, t1, t2 = V(), V(), V()
    WR = lambda i: 4*(i % 4)
    XS = lambda ks, m: 16 + 16*(ks % 4) + 4*m
    STG = 28672
    a("s_load_dwordx4 s[4:7], s[0:1], 32\ns_load_dwordx2 s[10:11], s[0:1], 72")
    a(f"v_lshrrev_b32 v{t0}, 6, v0\nv_and_b32 v{l}, 63, v0\nv_readfirstlane_b32 s3, v{t0}")
    a(f"s_cmp_ge_u32 s2, 256\ns_cbranch_scc1 {name}_end")
    a("s_and_b32 s20, s2, 7\ns_lshl_b32 s20, s20, 2\ns_bfe_u32 s21, s2, 0x20003\ns_add_u32 s20, s20, s21\ns_lshr_b32 s21, s2, 5")
    a("s_and_b32 s22, s3, 1\ns_lshr_b32 s23, s3, 1")
    a("s_mul_i32 s24, s22, 229376\ns_mul_i32 s25, s20, 224\ns_add_u32 s24, s24, s25\ns_movk_i32 s26, 4682\ns_movk_i32 s27, 7168")
    for i in range(7):
        a(f"v_add_u32 v{t0}, {64*i}, v{l}\nv_mul_u32_u24 v{t1}, s26, v{t0}\nv_lshrrev_b32 v{t1}, 16, v{t1}")
        a(f"v_mul_u32_u24 v{t2}, 14, v{t1}\nv_sub_u32 v{t0}, v{t0}, v{t2}")
        a(f"v_bfe_u32 v{t2}, v{t1}, 2, 1\nv_bfe_u32 v{vD+i}, v{t1}, 3, 1\nv_xor_b32 v{t2}, v{t2}, v{vD+i}\nv_mul_u32_u24 v{t2}, 12, v{t2}\nv_xor_b32 v{t1}, v{t1}, v{t2}")
        a(f"v_mul_u32_u24 v{t1}, s27, v{t1}\nv_lshl_add_u32 v{t1}, v{t0}, 4, v{t1}\nv_add_u32 v{vD+i}, s24, v{t1}")
        if i & 3: a(f"v_subrev_u32 v{vD+i}, {1024*(i&3)}, v{vD+i}")
    a(f"v_lshlrev_b32 v{vX}, 4, v{l}")
    a("s_lshl_b32 s28, s21, 4\ns_lshl_b32 s29, s3, 2\ns_add_u32 s28, s28, s29")
    for m in range(4): a(f"s_add_u32 s{32+m}, s28, {m}\ns_lshl_b32 s{32+m}, s{32+m}, 15")
    a("s_mul_i32 s30, s3, 7168\ns_mov_b32 s31, 0")
    a("s_waitcnt lgkmcnt(0)\ns_cmp_eq_u32 s23, 0\ns_cselect_b32 s4, s4, s6\ns_cselect_b32 s5, s5, s7")
    srd(a, 12, 4, 1024 * 7168); srd(a, 16, 10, HN_SIZE, HN_OFF)
    def dma(buf_expr):
        o = []
        for i in range(7):
            pre = ""
            if i == 0: pre = f"{buf_expr}s_mov_b32 m0, s38\n"
            if i == 4: pre = "s_add_u32 s38, s38, 4096\ns_mov_b32 m0, s38\n"
            post = "\ns_add_u32 s31, s31, 458752" if i == 6 else ""
            o.append((pre, f"buffer_load_dwordx4 v{vD+i}, s[12:15], s31 offen offset:{1024*(i&3)} lds{post}"))
        return o
    def xload(ks, off): return [f"buffer_load_dwordx4 {ar(XS(ks,m),4)}, v{vX}, s[16:19], s{32+m} offen offset:{off}" for m in range(4)]
    for p, q in dma("s_mov_b32 s38, s30\n"): a(p + q)
    a(xload(0, 0)); a(xload(1, 1024))
    for p, q in dma(f"s_add_u32 s38, s30, {STG}\n"): a(p + q)
    a(xload(2, 2048))
    nextra = hooks(a, V, "k4") if hooks else 0
    assert nextra == 0
    a(f"v_lshrrev_b32 v{t0}, 5, v{l}\nv_lshlrev_b32 v{t0}, 4, v{t0}\nv_bfe_u32 v{t1}, v{l}, 4, 1\nv_lshl_add_u32 v{t0}, v{t1}, 2, v{t0}\nv_bfe_u32 v{t1}, v{l}, 2, 2\nv_add_u32 v{t0}, v{t0}, v{t1}")
    a(f"v_mul_u32_u24 v{t0}, 224, v{t0}\nv_and_b32 v{t1}, 3, v{l}\nv_lshl_add_u32 v{t0}, v{t1}, 3, v{t0}")
    a(f"s_and_b32 s36, s20, 1\ns_lshl_b32 s37, s36, 5\nv_add_u32 v{vA}, s37, v{t0}\ns_cmp_eq_u32 s36, 0\ns_cselect_b32 s37, 192, 0\nv_add_u32 v{vB}, s37, v{t0}")
    for r in range(224): a(f"v_mov_b32 v{r}, 0")
    def wread(idx):
        ks, n = (idx // 14) % 4, idx % 14; t, mat = n >> 1, n & 1
        off = (ks >> 1) * STG + mat * 14336 + (ks & 1) * 7168 + (32 * t if t < 6 else 0)
        return [f"ds_read_b64_tr_b16 {ar(WR(idx)+2*h,2)}, v{vB if t == 6 else vA} offset:{off+1792*h}" for h in range(2)]
    a("s_waitcnt vmcnt(19)\ns_barrier")
    for i in range(3): a(wread(i))
    a(f"s_mov_b32 s39, 8\ns_mov_b32 s40, {2*STG}\n{name}_loop:")
    for ks in range(4):
        extra = [("", x) for x in xload(ks+3, ((ks+3) % 4) * 1024)]
        if ks == 0: extra[3] = ("", extra[3][1] + "".join(f"\ns_add_u32 s{32+m}, s{32+m}, 4096" for m in range(4)))
        if ks == 0: extra += dma("s_add_u32 s38, s30, s40\n")
        if ks == 2: extra += dma(f"s_add_u32 s38, s30, s40\ns_add_u32 s38, s38, {STG}\ns_xor_b32 s40, s40, {2*STG}\n")
        for n in range(14):
            idx = ks*14 + n; t, mat = n >> 1, n & 1
            if n == 0: a(f"s_waitcnt vmcnt({22 if ks & 1 else 15}) lgkmcnt(4)")
            else: a("s_waitcnt lgkmcnt(4)")
            mm = [f"{MF} {vr(acc(t,mat,m),4)}, {ar(WR(idx),4)}, {ar(XS(ks,m),4)}, {vr(acc(t,mat,m),4)}" for m in range(4)]
            rd = wread(idx+3)
            a(mm[0])
            if n == 11 and ks & 1:
                a("s_waitcnt vmcnt(19)\ns_barrier")
                if ks == 3: a(f"v_xor_b32 v{vA}, {2*STG}, v{vA}\nv_xor_b32 v{vB}, {2*STG}, v{vB}")
            a(rd[0]); a(mm[1]); a(rd[1])
            e = extra.pop(0) if extra else None
            if e: a(e[0])
            a(mm[2])
            if e: a(e[1])
            if idx == 55: a("s_sub_u32 s39, s39, 1\ns_cmp_lg_u32 s39, 0")
            a(mm[3])
        assert not extra
    a(f"s_cbranch_scc1 {name}_loop")
    srd(a, 16, 10, HH_SIZE, HH_OFF)
    a("s_lshr_b32 s37, s20, 1\ns_mul_i32 s37, s37, 7\ns_add_u32 s41, s37, 3\ns_lshl_b32 s42, s36, 2\ns_add_u32 s37, s37, s42\ns_lshl_b32 s37, s37, 10\ns_lshl_b32 s41, s41, 10\ns_lshl_b32 s42, s36, 3\ns_add_u32 s41, s41, s42")
    a("s_mul_i32 s28, s28, 114688\ns_add_u32 s37, s37, s28\ns_add_u32 s41, s41, s28")
    for m in range(4):
        for t in range(7):
            g_, u_ = acc(t,0,m), acc(t,1,m)
            a(f"v_pk_mul_f32 {vr(g_,2)}, {vr(g_,2)}, {vr(u_,2)}\nv_pk_mul_f32 {vr(g_+2,2)}, {vr(g_+2,2)}, {vr(u_+2,2)}")
            o = acc(t & ~1, 1, m) + 2*(t & 1)
            a(cvt(o, g_, g_+1)); a(cvt(o+1, g_+2, g_+3))
            if t & 1: a(f"buffer_store_dwordx4 {vr(acc(t-1,1,m),4)}, v{vX}, s[16:19], s37 offen offset:{1024*(t>>1)}")
            if t == 6: a(f"buffer_store_dwordx2 {vr(o,2)}, v{vX}, s[16:19], s41 offen")
        if m < 3: a("s_add_u32 s37, s37, 114688\ns_add_u32 s41, s41, 114688")
    a(f"s_waitcnt vmcnt(0)\n{name}_end:\ns_endpgm")
    return a.finish(), 256 + 80, 256, 4 * STG

def gen_k5(name, hooks=None, skew=True):
    a = Asm(); V = Alloc(1)
    ACC = V(32); acc = lambda n, m: ACC + (m*4+n)*4
    HS = V(64); XS = lambda ks, m: HS + 8*(ks % 8) + 4*m
    WF = V(32); WR = lambda i: WF + 4*(i % 8)
    HR = V(16); HF = V(32)
    l, vX, vD, vO, t0, t1 = V(), V(), V(), V(2), V(), V(); vA = V(4)
    a("s_load_dwordx4 s[4:7], s[0:1], 48\ns_load_dwordx2 s[10:11], s[0:1], 72")
    a(f"v_lshrrev_b32 v{t0}, 6, v0\nv_and_b32 v{l}, 63, v0\nv_readfirstlane_b32 s3, v{t0}")
    a(f"s_cmp_ge_u32 s2, 256\ns_cbranch_scc1 {name}_end")
    a("s_bfe_u32 s20, s2, 0x20001\ns_lshl_b32 s20, s20, 2\ns_lshr_b32 s24, s2, 6\ns_add_u32 s20, s20, s24")
    a("s_and_b32 s21, s2, 1\ns_lshl_b32 s21, s21, 3\ns_bfe_u32 s25, s2, 0x30003\ns_add_u32 s21, s21, s25")
    a("s_add_u32 s22, s24, s25\ns_and_b32 s22, s22, 3" if skew else "s_mov_b32 s22, 7")
    a(f"v_lshrrev_b32 v{t0}, 3, v{l}\nv_and_b32 v{t1}, 6, v{t0}\nv_and_b32 v{vD}, 7, v{l}\nv_xor_b32 v{vD}, v{vD}, v{t1}\nv_lshlrev_b32 v{vD}, 4, v{vD}\nv_lshl_add_u32 v{vD}, v{t0}, 11, v{vD}")
    a(f"s_lshl_b32 s26, s3, 16\ns_lshl_b32 s27, s21, 7\ns_add_u32 s26, s26, s27\nv_add_u32 v{vD}, s26, v{vD}")
    a(f"v_lshlrev_b32 v{vX}, 4, v{l}")
    a("s_lshl_b32 s28, s20, 3\ns_lshl_b32 s29, s3, 1\ns_add_u32 s28, s28, s29\ns_mul_i32 s29, s28, 114688\ns_lshl_b32 s30, s3, 12")
    for m in range(2):
        a(f"s_add_u32 s31, s28, {m}\ns_lshr_b32 s32, s31, 4\ns_lshl_b32 s32, s32, 8\ns_and_b32 s31, s31, 15\ns_lshl_b32 s31, s31, 2\ns_add_u32 s31, s31, s32")
        a(f"v_bfe_u32 v{t0}, v{l}, 3, 1\nv_lshlrev_b32 v{t0}, 1, v{t0}\nv_bfe_u32 v{t1}, v{l}, 1, 2\nv_lshl_add_u32 v{t0}, v{t1}, 6, v{t0}\nv_and_or_b32 v{t0}, v{l}, 1, v{t0}\nv_add_u32 v{t0}, s31, v{t0}")
        a(f"v_lshlrev_b32 v{vO+m}, 11, v{t0}\nv_bfe_u32 v{t0}, v{l}, 4, 1\nv_lshl_add_u32 v{vO+m}, v{t0}, 5, v{vO+m}\nv_lshrrev_b32 v{t0}, 5, v{l}\nv_lshl_add_u32 v{vO+m}, v{t0}, 4, v{vO+m}")
    a("s_waitcnt lgkmcnt(0)")
    srd(a, 12, 4, 3584 * 2048); srd(a, 16, 10, HH_SIZE, HH_OFF); srd(a, 44, 10, H_SIZE, H_OFF)
    for m in range(2):
        for p in range(2): a(f"buffer_load_dwordx4 {vr(HR+8*m+4*p,4)}, v{vO+m}, s[44:47], s27 offen offset:{64*p}")
    def stage_of(dst, pos):
        return (f"s_and_b32 s50, s{pos}, 3\ns_cmp_eq_u32 s50, s22\ns_cselect_b32 s50, 4, 0\ns_add_u32 s{dst}, s{pos}, s50\n"
                f"s_cmp_ge_u32 s{dst}, 28\ns_cselect_b32 s50, 28, 0\ns_sub_u32 s{dst}, s{dst}, s50\ns_cmp_ge_u32 s{pos}, 28\ns_cselect_b32 s{dst}, 28, s{dst}\n")
    def dma_next(): return stage_of(34, 33) + "s_lshl_b32 s34, s34, 18\ns_and_b32 s35, s33, 3\ns_lshl_b32 s35, s35, 14\ns_add_u32 s35, s35, s30\ns_add_u32 s33, s33, 1\n"
    def dma(i):
        pre = dma_next() if i == 0 else "s_add_u32 s34, s34, 16384\ns_add_u32 s35, s35, 1024\n"
        return pre + f"s_mov_b32 m0, s35\nbuffer_load_dwordx4 v{vD}, s[12:15], s34 offen lds"
    def x_next(): return stage_of(37, 36) + "s_lshl_b32 s37, s37, 12\ns_add_u32 s37, s37, s29\ns_add_u32 s38, s37, 114688\ns_add_u32 s36, s36, 1\n"
    def xload(ks):
        pre = x_next() if ks % 4 == 0 else ""
        return pre + "\n".join(f"buffer_load_dwordx4 {vr(XS(ks,m),4)}, v{vX}, s[16:19], s{37+m} offen offset:{1024*(ks%4)}" for m in range(2))
    a("s_mov_b32 s33, 0\ns_mov_b32 s36, 0")
    a(dma(0)); a(dma(1))
    for k in range(-7, 0):
        a(xload(k+7)); a(dma((k+1) % 4))
    nextra = hooks(a, V, "k5") if hooks else 0
    assert nextra == 0
    a(f"v_lshrrev_b32 v{t0}, 2, v{l}\nv_bfe_u32 v{t1}, v{t0}, 1, 2\nv_lshlrev_b32 v{t1}, 5, v{t1}\nv_lshl_add_u32 v{t1}, v{t0}, 7, v{t1}\nv_and_b32 v{t0}, 3, v{l}\nv_lshl_add_u32 v{vA}, v{t0}, 3, v{t1}")
    for n in range(1, 4): a(f"v_xor_b32 v{vA+n}, {32*n}, v{vA}")
    for r in range(32): a(f"v_mov_b32 v{ACC+r}, 0")
    a("s_waitcnt vmcnt(23)")
    for k in range(16): a(f"v_lshlrev_b32 v{HF+2*k}, 16, v{HR+k}\nv_and_b32 v{HF+2*k+1}, 0xffff0000, v{HR+k}")
    def wread(idx):
        ks, n = (idx // 4) % 8, idx % 4
        return [f"ds_read_b64_tr_b16 {vr(WR(idx)+2*h,2)}, v{vA+n} offset:{4096*ks+2048*h}" for h in range(2)]
    LA = 6
    a("s_waitcnt vmcnt(15)\ns_barrier")
    for i in range(LA): a(wread(i))
    a(f"s_mov_b32 s39, 14\n{name}_loop:")
    for ks in range(8):
        for n in range(4):
            idx = ks*4 + n
            if n == 0: a(f"s_waitcnt vmcnt(19) lgkmcnt({2*LA-2})")
            else: a(f"s_waitcnt lgkmcnt({2*LA-2})")
            mm = [f"{MF} {vr(acc(n,m),4)}, {vr(WR(idx),4)}, {vr(XS(ks,m),4)}, {vr(acc(n,m),4)}" for m in range(2)]
            rd = wread(idx+LA)
            a(mm[0])
            if (idx + LA) % 16 == 0:
                a("s_waitcnt vmcnt(12)\ns_barrier")
                if idx + LA == 32:
                    for q in range(4): a(f"v_xor_b32 v{vA+q}, 32768, v{vA+q}")
            a(rd[0]); a(mm[1]); a(rd[1])
            if n == 0: a(xload(ks+7))
            if n == 1: a(dma((ks+1) % 4))
            if idx == 31: a("s_sub_u32 s39, s39, 1\ns_cmp_lg_u32 s39, 0")
    a(f"s_cbranch_scc1 {name}_loop")
    srd(a, 12, 6, 2048 * 2048)
    for m in range(2):
        for p in range(2):
            b = acc(2*p, m); h = HF + 16*m + 8*p
            for r in range(4): a(f"v_permlane16_swap_b32 v{b+r}, v{b+4+r}")
            for k in range(4): a(f"v_pk_add_f32 {vr(b+2*k,2)}, {vr(b+2*k,2)}, {vr(h+2*k,2)}")
            for k in range(4): a(cvt(h+k, b+2*k, b+2*k+1))
            a(f"buffer_store_dwordx4 {vr(h,4)}, v{vO+m}, s[12:15], s27 offen offset:{64*p}")
    a(f"s_waitcnt vmcnt(0)\n{name}_end:\ns_endpgm")
    nv = (V.n + 3) // 4 * 4
    return a.finish(), nv, nv, 65536
```

```python
import sys
from asmgen import *
import gen_fft, gen_gemm
PFX = "sequential_preLN__spectral_gfnet__glu_gated_bilinear__prompt"
def build(path, hooks=None, only=None):
    ks = []
    t, nv, lds = gen_fft.gen_k1("ln_rowdft_kernel", hooks); ks.append(("ln_rowdft_kernel", t, nv, (nv+3)//4*4, lds, 512))
    t, nv, lds = gen_fft.gen_k2("colfilter_kernel", hooks); ks.append(("colfilter_kernel", t, nv, (nv+3)//4*4, lds, 257))
    t, nv, lds = gen_fft.gen_k3("rowidft_ln_kernel", hooks); ks.append(("rowidft_ln_kernel", t, nv, (nv+3)//4*4, lds, 256))
    t, nv, ao, lds = gen_gemm.gen_k4("gateup_kernel", hooks); ks.append(("gateup_kernel", t, nv, ao, lds, 256))
    t, nv, ao, lds = gen_gemm.gen_k5(PFX + "_kernel", hooks); ks.append((PFX + "_kernel", t, nv, ao, lds, 256))
    ref = open("cdna_kernels/" + PFX + ".s.ref").read().split("\n")
    hdr = [x for x in ref[:11]]
    out = "\n".join(hdr) + "\n"
    for n, t, nv, ao, lds, grid in ks: out += f"; @launch kernel={n} grid=({grid},1,1) block=(256,1,1) lds={lds}\n"
    out += '.amdgcn_target "amdgcn-amd-amdhsa--gfx950"\n.text\n'
    for n, t, nv, ao, lds, grid in ks: out += kernel_text(n, t)
    out += '.section .rodata,"a"\n'
    for n, t, nv, ao, lds, grid in ks: out += kernel_desc(n, nv, ao, 64)
    open(path, "w").write(out)
    for n, t, nv, ao, lds, grid in ks: print(n, "vgpr", nv, "lds", lds, "lines", len(t.splitlines()), "nops", t.count("s_nop"))
if __name__ == "__main__":
    build(sys.argv[1] if len(sys.argv) > 1 else "cdna_kernels/" + PFX + ".s")
```

```python
import re

TRANS = ("v_exp_", "v_log_", "v_rcp_", "v_rsq_", "v_sqrt_", "v_sin_", "v_cos_")

def regs_of(tok):
    tok = tok.strip().lstrip("-")
    if tok.startswith("abs(") or tok.startswith("|"):
        tok = tok.strip("|").replace("abs(", "").rstrip(")")
    m = re.fullmatch(r"([vas])(\d+)", tok)
    if m: return [(m.group(1), int(m.group(2)))]
    m = re.fullmatch(r"([vas])\[(\d+):(\d+)\]", tok)
    if m: return [(m.group(1), i) for i in range(int(m.group(2)), int(m.group(3)) + 1)]
    if tok in ("vcc", "exec", "m0"): return [(tok, 0)]
    if tok in ("vcc_lo", "vcc_hi"): return [("vcc", 0)]
    if tok in ("exec_lo", "exec_hi"): return [("exec", 0)]
    return []

class Ins:
    def __init__(self, text):
        self.text = text
        t = text.split(";")[0].strip()
        self.label = None; self.op = None
        self.defs = set(); self.uses = set(); self.srcc = set(); self.srcab = set(); self.sdata = set()
        self.kind = "other"; self.ws = 1
        if not t or t.startswith("."):
            self.kind = "nop0"; self.ws = 0; return
        if t.endswith(":"):
            self.label = t[:-1]; self.kind = "label"; self.ws = 0; return
        p = t.split(None, 1); op = self.op = p[0]
        rest = p[1] if len(p) > 1 else ""
        ops = []
        for part in re.split(r",(?![^\[]*\])", rest):
            ops.append(part.strip().split()[0] if part.strip() else "")
        self.ops = ops; R = [regs_of(o) for o in ops]
        flat = lambda xs: set(r for x in xs for r in x)
        self.dpp = bool(re.search(r"row_|quad_perm|wave_", rest))
        if op == "s_nop": self.kind = "snop"; self.ws = int(ops[0], 0) + 1
        elif op.startswith("v_mfma"):
            self.kind = "mfma"; self.passes = 8 if "32x32" in op else 4
            self.defs = set(R[0]); self.srcab = flat(R[1:3]); self.srcc = set(R[3]); self.uses = self.srcab | self.srcc
            self.dlist = R[0]; self.clist = R[3]
        elif op.startswith("v_"):
            self.kind = "valu"; self.trans = op.startswith(TRANS)
            if op.startswith("v_permlane") and "swap" in op: self.defs = flat(R[:2]); self.uses = flat(R[:2])
            elif re.match(r"v_(add|sub|subrev)_co|v_(addc|subb)_co", op): self.defs = flat(R[:2]); self.uses = flat(R[2:])
            else:
                self.defs = set(R[0]); self.uses = flat(R[1:])
                if re.match(r"v_(fmac|mac|dot2c|pk_fmac|writelane)", op) or self.dpp: self.uses |= set(R[0])
                if op.startswith("v_cndmask") and len(ops) == 3: self.uses.add(("vcc", 0))
        elif op.startswith("buffer_") or op.startswith("global_"):
            self.kind = "vmem"; lds = bool(re.search(r"\blds\b", rest)) or "load_lds" in op
            self.lds = lds
            if lds: self.uses = flat(R) | {("m0", 0)}
            elif "load" in op: self.defs = set(R[0]); self.uses = flat(R[1:])
            elif op.startswith("buffer_"):
                self.uses = flat(R); self.sdata = set(R[0]) if re.search(r"x3|x4", op) else set()
            else:
                self.uses = flat(R); self.sdata = set(R[1]) if re.search(r"x3|x4", op) else set()
            if op in ("buffer_wbl2", "buffer_inv"): self.uses = set(); self.defs = set()
        elif op.startswith("ds_"):
            self.kind = "ds"
            if "read" in op or "permute" in op or "swizzle" in op: self.defs = set(R[0]); self.uses = flat(R[1:])
            else: self.uses = flat(R)
        elif op.startswith("s_"):
            self.kind = "salu"
            if op.startswith(("s_cmp", "s_waitcnt", "s_barrier", "s_branch", "s_cbranch", "s_endpgm", "s_setprio", "s_sleep", "s_bitcmp")):
                self.uses = flat(R)
            else:
                self.defs = set(R[0]) if R else set(); self.uses = flat(R[1:])
                if "saveexec" in op: self.defs.add(("exec", 0))

def need(p, c):
    n = 0
    vec = lambda s: {r for r in s if r[0] in "va" and len(r[0]) == 1}
    sca = lambda s: {r for r in s if r[0] in ("s", "vcc")}
    if p.kind == "valu":
        d = vec(p.defs); sd = sca(p.defs)
        if c.kind == "mfma" and d & c.uses: n = max(n, 2)
        if c.kind == "valu":
            if p.trans and not c.trans and d & c.uses: n = max(n, 1)
            if (c.dpp or c.op.startswith("v_permlane")) and d & c.uses: n = max(n, 2)
            if c.op.startswith(("v_readlane", "v_readfirstlane")) and d & c.uses: n = max(n, 1)
            if sd & c.uses: n = max(n, 4 if c.op.startswith(("v_readlane", "v_writelane")) else 2)
        if c.kind == "vmem" and sd & c.uses: n = max(n, 5)
        if ("exec", 0) in p.defs: raise Exception("VALU exec write not modelled")
    if p.kind == "mfma":
        big = p.passes == 8
        if c.kind == "mfma":
            if p.defs & c.srcab: n = max(n, 12 if big else 8)
            if p.defs & c.srcc and not (p.dlist == c.clist and p.passes == c.passes): n = max(n, 10 if big else 6)
            if p.defs & c.defs and not (p.defs & c.srcc): n = max(n, 10 if big else 6)
        elif c.kind in ("valu", "vmem", "ds"):
            if p.defs & (c.uses | c.defs): n = max(n, 12 if big else 8)
            if c.kind == "valu" and p.srcc & c.defs: n = max(n, 7 if big else 3)
    if p.kind == "salu" and ("m0", 0) in p.defs and c.kind == "vmem" and getattr(c, "lds", False): n = max(n, 1)
    if p.kind == "vmem" and p.sdata and p.sdata & c.defs: n = max(n, 2 if c.kind in ("valu", "mfma") else 1)
    return n

class Asm:
    def __init__(self): self.L = []
    def __call__(self, s):
        if isinstance(s, (list, tuple)):
            for x in s: self(x)
            return
        for line in s.split("\n"):
            if line.strip(): self.L.append(line.strip())
    def finish(self):
        ins = [Ins(t) for t in self.L]; out = []; self.nops = 0
        for c in ins:
            if c.kind in ("valu", "mfma", "vmem", "ds", "salu"):
                dist = 0; pad = 0
                for p in reversed(out):
                    if dist >= 14: break
                    if p.op in ("s_branch", "s_endpgm"): break
                    k = need(p, c)
                    if k > dist: pad = max(pad, k - dist)
                    dist += p.ws
                if pad:
                    out.append(Ins(f"s_nop {pad - 1}")); self.nops += 1
            out.append(c)
        lab = {x.label: i for i, x in enumerate(out) if x.label}
        for i, b in enumerate(out):
            if b.op and b.op.startswith(("s_branch", "s_cbranch")) and b.ops[0] in lab:
                head = out[lab[b.ops[0]]:lab[b.ops[0]] + 40]
                dh = 0
                for c in head:
                    if dh >= 14: break
                    dist = dh + 1
                    for p in reversed(out[max(0, i - 20):i]):
                        if dist >= 14: break
                        if c.op and p.op and need(p, c) > dist:
                            raise Exception(f"hazard across branch {b.text}: {p.text} -> {c.text}")
                        dist += p.ws
                    dh += c.ws
                    if c.op in ("s_branch", "s_endpgm"): break
        return "\n".join(("" if x.label else "    ") + x.text for x in out)

def interleave(main, fill, per=1, start=0):
    out = []; fill = list(fill); k = 0; acc = 0.0
    for i, m in enumerate(main):
        out.append(m)
        if i >= start:
            acc += per
            while acc >= 1 and k < len(fill):
                out.append(fill[k]); k += 1; acc -= 1
    return out + fill[k:]

def vr(n, c=1): return f"v{n}" if c == 1 else f"v[{n}:{n + c - 1}]"
def ar(n, c=1): return f"a{n}" if c == 1 else f"a[{n}:{n + c - 1}]"
def sr(n, c=1): return f"s{n}" if c == 1 else f"s[{n}:{n + c - 1}]"

class Alloc:
    def __init__(self, start=0, limit=256): self.n = start; self.limit = limit
    def __call__(self, c=1, align=None):
        al = align or (2 if c > 1 else 1)
        self.n = (self.n + al - 1) // al * al
        r = self.n; self.n += c
        assert self.n <= self.limit, "out of registers"
        return r

def fhex(x):
    import struct
    return "0x%08x" % struct.unpack("<I", struct.pack("<f", x))[0]

def srd(a, d, base, nbytes, off=0):
    if off:
        a(f"s_add_u32 s{d}, s{base}, {off}\ns_addc_u32 s{d+1}, s{base+1}, 0")
    else:
        a(f"s_mov_b32 s{d}, s{base}\ns_mov_b32 s{d+1}, s{base+1}")
    a(f"s_mov_b32 s{d+2}, {nbytes}\ns_mov_b32 s{d+3}, 0x20000")

def kernel_text(name, body):
    return f".globl {name}\n.p2align 8\n.type {name},@function\n{name}:\n{body}\n"

def kernel_desc(name, vgpr, accum, sgpr=102):
    return (f".p2align 6\n.amdhsa_kernel {name}\n  .amdhsa_next_free_vgpr {vgpr}\n  .amdhsa_next_free_sgpr {sgpr}\n"
            f"  .amdhsa_accum_offset {accum}\n  .amdhsa_group_segment_fixed_size 0\n  .amdhsa_kernarg_size 80\n"
            f"  .amdhsa_user_sgpr_count 2\n  .amdhsa_user_sgpr_kernarg_segment_ptr 1\n  .amdhsa_system_sgpr_workgroup_id_x 1\n"
            f"  .amdhsa_float_denorm_mode_32 3\n.end_amdhsa_kernel\n")

STAMP = {"on": False}
STAMP_OFF = 0x3000000
def stamp(a, i):
    if STAMP["on"]: a(f"{'s_memtime' if STAMP.get('clk') else 's_memrealtime'} s[{64+2*i}:{65+2*i}]")
def stamp_flush(a, kid, n, v=8):
    if not STAMP["on"]: return
    a("s_waitcnt vmcnt(0)"); stamp(a, n); a("s_waitcnt lgkmcnt(0)\ns_mov_b64 exec, 1")
    a(f"s_lshl_b32 s62, s2, 2\ns_add_u32 s62, s62, s3\ns_lshl_b32 s62, s62, 6\ns_add_u32 s62, s62, {STAMP_OFF + kid * 0x40000}\nv_mov_b32 v{v}, s62")
    for i in range(n + 1): a(f"v_mov_b32 v{v+1}, s{64+2*i}\nglobal_store_dword v{v}, v{v+1}, s[10:11] offset:{4*i}")
```

```python
from asmgen import *

Z1_OFF, Z1_SIZE = 0x0000000, 257 * 16384
WT_OFF, WT_SIZE = 0x0500000, 514 * 8192
Z2_STRIDE = 16512
Z2_OFF, Z2_SIZE = 0x0A00000, 256 * Z2_STRIDE + 1024
H_OFF, H_SIZE = 0x0F00000, 2048 * 2048
HN_OFF, HN_SIZE = 0x1400000, 2048 * 2048
HH_OFF, HH_SIZE = 0x1900000, 2048 * 3584 * 2
CNT_OFF = 0x2800000
MF = "v_mfma_f32_16x16x32_bf16"

def mfma(d, a, b, first): return f"{MF} {vr(d,4)}, {vr(a,4)}, {vr(b,4)}, {'0' if first else vr(d,4)}"
def cvt(d, a, b, na=False, nb=False): return f"v_cvt_pk_bf16_f32 v{d}, {'-' if na else ''}v{a}, {'-' if nb else ''}v{b}"

def lane_ids(a, V):
    l, j, g = V(), V(), V()
    a(f"v_lshrrev_b32 v{g}, 6, v0\nv_and_b32 v{l}, 63, v0\nv_readfirstlane_b32 s3, v{g}")
    a(f"v_and_b32 v{j}, 15, v{l}\nv_lshrrev_b32 v{g}, 4, v{l}")
    return l, j, g

def sincos(a, idxf, step, n, tc, ts, ta):
    for i in range(n): a(f"v_mul_f32 v{ta+i}, v{idxf+i}, v{step}")
    for i in range(n): a(f"v_cos_f32 v{tc+i}, v{ta+i}")
    for i in range(n): a(f"v_sin_f32 v{ts+i}, v{ta+i}")

def twiddle(re, im, c, s, t, inverse=False):
    o = []
    for h in (0, 2): o.append(f"v_pk_mul_f32 {vr(t+h,2)}, {vr(re+h,2)}, {vr(s+h,2)}")
    for h in (0, 2): o.append(f"v_pk_mul_f32 {vr(re+h,2)}, {vr(re+h,2)}, {vr(c+h,2)}")
    for h in (0, 2):
        o.append(f"v_pk_fma_f32 {vr(re+h,2)}, {vr(im+h,2)}, {vr(s+h,2)}, {vr(re+h,2)}" + (" neg_lo:[1,0,0] neg_hi:[1,0,0]" if inverse else ""))
    for h in (0, 2):
        o.append(f"v_pk_fma_f32 {vr(im+h,2)}, {vr(im+h,2)}, {vr(c+h,2)}, {vr(t+h,2)}" + ("" if inverse else " neg_lo:[0,0,1] neg_hi:[0,0,1]"))
    return o

def row_stats(a, sa, qa, sb, qb, ra, rb, t):
    for r in (sa, qa, sb, qb): a(f"v_add_f32 v{r}, v{r}, v{r+1}")
    a(f"v_permlane16_swap_b32 v{sa}, v{qa}\nv_permlane16_swap_b32 v{sb}, v{qb}")
    a(f"v_add_f32 v{sa}, v{sa}, v{qa}\nv_add_f32 v{sb}, v{sb}, v{qb}")
    a(f"v_permlane32_swap_b32 v{sa}, v{sb}")
    a(f"v_add_f32 v{sa}, v{sa}, v{sb}")
    for k in (8, 4, 2, 1): a(f"v_add_f32 v{sa}, v{sa}, v{sa} row_ror:{k}")
    a(f"v_mul_f32 v{sa}, {fhex(1/1024)}, v{sa}")
    a(f"v_readlane_b32 s40, v{sa}, 0\nv_readlane_b32 s41, v{sa}, 16\nv_readlane_b32 s42, v{sa}, 32\nv_readlane_b32 s43, v{sa}, 48")
    a(f"v_mov_b32 v{t}, s41\nv_mov_b32 v{t+1}, s43")
    a(f"v_fma_f32 v{t}, -s40, s40, v{t}\nv_fma_f32 v{t+1}, -s42, s42, v{t+1}")
    a(f"v_max_f32 v{t}, 0, v{t}\nv_max_f32 v{t+1}, 0, v{t+1}")
    a(f"v_add_f32 v{t}, {fhex(1e-5)}, v{t}\nv_add_f32 v{t+1}, {fhex(1e-5)}, v{t+1}")
    a(f"v_rsq_f32 v{ra}, v{t}\nv_rsq_f32 v{rb}, v{t+1}")
    a(f"v_mul_f32 v{ra+1}, s40, v{ra}\nv_mul_f32 v{rb+1}, s42, v{rb}")

def norm(p, r): return f"v_pk_fma_f32 {vr(p,2)}, {vr(p,2)}, {vr(r,2)}, {vr(r,2)} op_sel:[0,0,1] op_sel_hi:[1,0,1] neg_lo:[0,0,1] neg_hi:[0,0,1]"

def gen_k1(name, hooks=None):
    a = Asm(); V = Alloc(1)
    a("s_load_dwordx4 s[4:7], s[0:1], 0\ns_load_dwordx2 s[8:9], s[0:1], 16\ns_load_dwordx2 s[10:11], s[0:1], 72\ns_load_dwordx4 s[48:51], s[0:1], 32")
    stamp(a, 0)
    npre = hooks(a, V, "k1start") if hooks else 0
    l, j, g = lane_ids(a, V)
    a(f"s_cmp_ge_u32 s2, 256\ns_cbranch_scc1 {name}_prep")
    a("s_and_b32 s20, s2, 7\ns_lshr_b32 s21, s2, 3")
    a("s_lshl_b32 s22, s20, 7\ns_lshl_b32 s23, s3, 5\ns_add_u32 s22, s22, s23\ns_add_u32 s22, s22, s21\ns_lshl_b32 s22, s22, 12")
    voff = V(); X = V(16); P = V(32)
    a(f"v_lshlrev_b32 v{voff}, 9, v{g}\nv_lshl_add_u32 v{voff}, v{j}, 2, v{voff}")
    a("s_waitcnt lgkmcnt(0)")
    srd(a, 12, 4, 2048 * 2048)
    for e in range(2):
        for i in range(8): a(f"buffer_load_dword v{X+8*e+i}, v{voff}, s[12:15], s22 offen offset:{e*2048+64*i}")
    nextra = hooks(a, V, "k1main") if hooks else 0
    stamp(a, 1)
    srd(a, 16, 10, Z1_SIZE, Z1_OFF)
    pf = V(8); ta = V(8); tc = V(8); ts = V(8); step = V()
    C1 = [V(4) for _ in range(2)]; S1 = [V(4) for _ in range(2)]; N1 = [V(4) for _ in range(2)]
    C2 = [V(4) for _ in range(2)]; S2 = [V(4) for _ in range(2)]; X2 = [V(4) for _ in range(2)]
    TWc = [[V(4) for _ in range(2)] for _ in range(2)]; TWs = [[V(4) for _ in range(2)] for _ in range(2)]
    a(f"v_lshlrev_b32 v{step}, 3, v{g}\nv_cvt_f32_u32 v{pf}, v{step}")
    for i in range(1, 8): a(f"v_add_f32 v{pf+i}, 1.0, v{pf+i-1}")
    for T in range(2):
        a(f"v_lshrrev_b32 v{step}, 2, v{j}\nv_lshlrev_b32 v{step}, 3, v{step}\nv_and_or_b32 v{step}, v{j}, 3, v{step}")
        if T: a(f"v_or_b32 v{step}, 4, v{step}")
        a(f"v_cvt_f32_u32 v{step}, v{step}\nv_mul_f32 v{step}, {fhex(1/32)}, v{step}")
        sincos(a, pf, step, 8, tc, ts, ta)
        for k in range(4):
            a(cvt(C1[T]+k, tc+2*k, tc+2*k+1)); a(cvt(S1[T]+k, ts+2*k, ts+2*k+1)); a(cvt(N1[T]+k, ts+2*k, ts+2*k+1, True, True))
        for i in range(8): a(f"v_mul_f32 v{ta+i}, {fhex(1/32)}, v{ta+i}")
        for i in range(8): a(f"v_cos_f32 v{TWc[T][i&1]+(i>>1)}, v{ta+i}\nv_sin_f32 v{TWs[T][i&1]+(i>>1)}, v{ta+i}")
    for T in range(2):
        a(f"v_or_b32 v{step}, {16*T}, v{j}\nv_cvt_f32_u32 v{step}, v{step}\nv_mul_f32 v{step}, {fhex(1/32)}, v{step}")
        sincos(a, pf, step, 8, tc, ts, ta)
        for k in range(4):
            a(cvt(C2[T]+k, tc+2*k, tc+2*k+1)); a(cvt(S2[T]+k, ts+2*k, ts+2*k+1))
            src = tc if T else ts
            a(cvt(X2[T]+k, src+2*k, src+2*k+1, True, True))
    wa = V(); ra = V(4); so = V(); t0 = V(); t1 = V()
    a(f"v_bfe_u32 v{t0}, v{j}, 1, 2\nv_xor_b32 v{t0}, v{t0}, v{g}\nv_lshlrev_b32 v{t0}, 4, v{t0}\nv_lshl_add_u32 v{wa}, v{j}, 6, v{t0}")
    a(f"s_mul_i32 s24, s3, 2112\nv_add_u32 v{wa}, s24, v{wa}")
    a(f"v_bfe_u32 v{t0}, v{l}, 2, 2\nv_mul_u32_u24 v{ra}, 2112, v{t0}")
    a(f"v_lshrrev_b32 v{t0}, 1, v{g}\nv_lshl_add_u32 v{ra}, v{t0}, 6, v{ra}")
    a(f"v_and_b32 v{t0}, 1, v{g}\nv_lshl_add_u32 v{ra}, v{t0}, 5, v{ra}")
    a(f"v_and_b32 v{t0}, 3, v{l}\nv_lshl_add_u32 v{ra}, v{t0}, 3, v{ra}")
    a(f"s_lshl_b32 s24, s3, 9\nv_add_u32 v{ra}, s24, v{ra}")
    for n in range(1, 4): a(f"v_xor_b32 v{ra+n}, {16*n}, v{ra}")
    a("s_lshr_b32 s24, s21, 4\ns_lshl_b32 s24, s24, 7\ns_lshl_b32 s25, s20, 4\ns_add_u32 s24, s24, s25\ns_and_b32 s25, s21, 15\ns_add_u32 s24, s24, s25")
    a("s_bfe_u32 s25, s24, 0x20002\ns_lshl_b32 s24, s24, 6")
    a(f"s_lshl_b32 s26, s3, 8\ns_cmp_ge_u32 s3, 2\ns_cbranch_scc1 {name}_mir")
    a(f"v_add_u32 v{t0}, s26, v{l}\nv_and_b32 v{t1}, 1, v{t0}")
    a("s_mov_b32 s28, 0\ns_mov_b32 s29, 0x80000\ns_mov_b32 s30, 0x100000\ns_mov_b32 s31, 0x180000")
    a(f"s_branch {name}_adr\n{name}_mir:")
    a(f"s_sub_u32 s26, {1024-192}, s26\nv_sub_u32 v{t0}, s26, v{l}\nv_and_b32 v{t1}, 1, v{t0}\nv_xor_b32 v{t1}, 3, v{t1}")
    a("s_mov_b32 s31, 0\ns_mov_b32 s30, 0x80000\ns_mov_b32 s29, 0x100000\ns_mov_b32 s28, 0x180000")
    a(f"{name}_adr:")
    a(f"v_lshrrev_b32 v{t0}, 1, v{t0}\nv_xor_b32 v{t1}, s25, v{t1}\nv_lshlrev_b32 v{so}, 14, v{t0}\nv_lshl_add_u32 v{so}, v{t1}, 4, v{so}\nv_add_u32 v{so}, s24, v{so}")
    stamp(a, 2)
    st = V(8); rn = V(4); tt = V(4)
    for e in range(2):
        for i in range(8):
            a(f"s_waitcnt vmcnt({15-8*e-i+nextra})")
            a(f"v_lshlrev_b32 v{P+16*e+2*i}, 16, v{X+8*e+i}\nv_and_b32 v{P+16*e+2*i+1}, 0xffff0000, v{X+8*e+i}")
            p = vr(P+16*e+2*i, 2); s_ = vr(st+4*e, 2); q_ = vr(st+4*e+2, 2)
            if i == 0: a(f"v_pk_mul_f32 {q_}, {p}, {p}")
            elif i == 1: a(f"v_pk_add_f32 {s_}, {p}, {vr(P+16*e,2)}\nv_pk_fma_f32 {q_}, {p}, {p}, {q_}")
            else: a(f"v_pk_add_f32 {s_}, {p}, {s_}\nv_pk_fma_f32 {q_}, {p}, {p}, {q_}")
    stamp(a, 3)
    row_stats(a, st, st+2, st+4, st+6, rn, rn+2, tt)
    A1 = [[X + 8*e + 4*tq for tq in range(2)] for e in range(2)]
    for e in range(2):
        for i in range(8): a(norm(P+16*e+2*i, rn+2*e))
        for tq in range(2):
            for k in range(4): a(cvt(A1[e][tq]+k, P+16*e+4*k+tq, P+16*e+4*k+2+tq))
    D = pf
    D1 = lambda tq, T, part: D + ((T*2+tq)*2+part)*4
    for T in range(2):
        for tq in range(2): a(mfma(D1(tq,T,0), A1[0][tq], C1[T], True)); a(mfma(D1(tq,T,1), A1[1][tq], C1[T], True))
        for tq in range(2): a(mfma(D1(tq,T,0), A1[1][tq], S1[T], False)); a(mfma(D1(tq,T,1), A1[0][tq], N1[T], False))
    A2 = [[X + 8*T + 4*p for p in range(2)] for T in range(2)]
    E = P
    D2 = lambda T1, T2, part: E + ((T2*2+part)*2+T1)*4
    for T in range(2):
        for tq in range(2): a(twiddle(D1(tq,T,0), D1(tq,T,1), TWc[T][tq], TWs[T][tq], tt))
        for part in range(2):
            for r in range(4): a(cvt(A2[T][part]+r, D1(0,T,part)+r, D1(1,T,part)+r))
        for T2 in range(2):
            a(mfma(D2(T,T2,0), A2[T][0], C2[T2], True))
            a(mfma(D2(T,T2,1), A2[T][0] if T2 else A2[T][1], S2[T2] if T2 else C2[T2], True))
        for T2 in range(2):
            a(mfma(D2(T,T2,0), A2[T][1], S2[T2], False))
            a(mfma(D2(T,T2,1), A2[T][1] if T2 else A2[T][0], X2[T2], False))
    for T2 in range(2):
        for part in range(2):
            o = D + (T2*2+part)*4; s_ = D2(0,T2,part)
            for k in range(4): a(cvt(o+k, s_+2*k, s_+2*k+1))
            a(f"ds_write_b128 v{wa}, {vr(o,4)} offset:{part*8448+T2*1024}")
    stamp(a, 4)
    a("s_waitcnt lgkmcnt(0)\ns_barrier")
    for n in range(4):
        a(f"ds_read_b64_tr_b16 {vr(X+4*n,2)}, v{ra+n} offset:{n*128}\nds_read_b64_tr_b16 {vr(X+4*n+2,2)}, v{ra+n} offset:{n*128+8448}")
    for n in range(4):
        a(f"s_waitcnt lgkmcnt({6-2*n})\nbuffer_store_dwordx4 {vr(X+4*n,4)}, v{so}, s[16:19], s{28+n} offen")
    stamp(a, 5); stamp_flush(a, 0, 6, t0)
    a(f"s_bitcmp1_b32 s3, 0\ns_cbranch_scc1 {name}_end")
    a(f"v_mov_b32 v{D}, v{X}\nv_mov_b32 v{D+1}, v{X+1}\nv_xor_b32 v{D+2}, 0x80008000, v{X+2}\nv_xor_b32 v{D+3}, 0x80008000, v{X+3}\nv_xor_b32 v{t0}, 48, v{so}")
    a(f"s_mov_b64 exec, 1\nbuffer_store_dwordx4 {vr(D,4)}, v{t0}, s[16:19], s28 offen")
    a("s_endpgm")
    nv_main = V.n
    V = Alloc(g + 1)
    a(f"{name}_prep:\ns_cmp_ge_u32 s2, 512\ns_cbranch_scc1 {name}_end\ns_waitcnt lgkmcnt(0)")
    srd(a, 12, 6, 2048 * 1026); srd(a, 16, 8, 2048 * 1026); srd(a, 20, 10, WT_SIZE, WT_OFF)
    jt = V(); ad = V(2); WS = V(); t0 = V(); t1 = V()
    a(f"s_cmp_lg_u32 s3, 0\ns_cbranch_scc1 {name}_nosym")
    a("s_sub_u32 s24, s2, 256\ns_lshr_b32 s44, s24, 7\ns_and_b32 s24, s24, 127\ns_lshl_b32 s24, s24, 3\ns_lshl_b32 s26, s44, 10")
    a(f"v_lshrrev_b32 v{jt}, 3, v{l}\nv_add_u32 v{jt}, s24, v{jt}\nv_bfe_u32 v{t0}, v{l}, 1, 1\nv_lshl_add_u32 v{t0}, v{t0}, 10, v{jt}")
    a(f"v_sub_u32 v{t1}, 2048, v{t0}\nv_and_b32 v{t1}, 2047, v{t1}\nv_and_b32 v{WS}, 4, v{l}\nv_cmp_ne_u32 vcc, 0, v{WS}\nv_and_b32 v{WS}, 1, v{l}")
    a(f"v_cndmask_b32 v{t0}, v{t0}, v{t1}, vcc\nv_cmp_ne_u32 vcc, 0, v{WS}\nv_mul_u32_u24 v{t0}, 1026, v{t0}\nv_add_u32 v{t0}, s26, v{t0}")
    a(f"v_mov_b32 v{ad}, s6\nv_mov_b32 v{t1}, s8\nv_cndmask_b32 v{ad}, v{ad}, v{t1}, vcc\nv_mov_b32 v{ad+1}, s7\nv_mov_b32 v{t1}, s9\nv_cndmask_b32 v{ad+1}, v{ad+1}, v{t1}, vcc")
    a(f"v_add_co_u32 v{ad}, vcc, v{ad}, v{t0}\nv_addc_co_u32 v{ad+1}, vcc, 0, v{ad+1}, vcc\nglobal_load_ushort v{WS}, {vr(ad,2)}, off")
    a(f"{name}_nosym:")
    a("s_sub_u32 s24, s2, 256\ns_and_b32 s27, s24, 7\ns_bfe_u32 s26, s24, 0x30003\ns_lshr_b32 s25, s24, 6")
    a("s_lshl_b32 s28, s26, 2\ns_lshl_b32 s29, s27, 7\ns_add_u32 s28, s28, s29\ns_mul_i32 s28, s28, 1026")
    a("s_lshl_b32 s29, s25, 8\ns_add_u32 s28, s28, s29\ns_lshl_b32 s29, s3, 6\ns_add_u32 s28, s28, s29")
    vo = V(); W = V(16); O = V(16, 4); so2 = V(); kp = V(); jj = V()
    a(f"v_and_b32 v{jj}, 3, v{l}\nv_mul_u32_u24 v{vo}, 1026, v{jj}\nv_and_b32 v{kp}, 60, v{l}\nv_add3_u32 v{vo}, v{vo}, v{kp}, s28")
    for r in range(4):
        for hf in range(2): a(f"s_mov_b32 s{32+2*r+hf}, {(32*r+1024*hf)*1026}")
    for r in range(4):
        for hf in range(2):
            for arr in range(2): a(f"buffer_load_dword v{W+4*r+2*hf+arr}, v{vo}, s[{12+4*arr}:{15+4*arr}], s{32+2*r+hf} offen")
    npf = hooks(a, V, "k1prep0") if hooks else 0
    stamp(a, 1)
    a(f"s_lshl_b32 s28, s25, 7\ns_lshl_b32 s29, s3, 5\ns_add_u32 s28, s28, s29\nv_lshrrev_b32 v{kp}, 1, v{kp}\nv_add_u32 v{kp}, s28, v{kp}")
    a("s_lshr_b32 s28, s26, 2\ns_lshl_b32 s28, s28, 12\ns_lshl_b32 s29, s27, 8\ns_and_b32 s30, s29, 0x400\ns_add_u32 s29, s29, s30\ns_add_u32 s28, s28, s29\ns_and_b32 s29, s26, 3\ns_lshl_b32 s29, s29, 6\ns_add_u32 s28, s28, s29")
    a(f"v_lshlrev_b32 v{so2}, 13, v{kp}\nv_lshl_add_u32 v{so2}, v{jj}, 4, v{so2}\nv_add_u32 v{so2}, s28, v{so2}")
    a("s_mov_b32 s30, 0x05040100\ns_mov_b32 s31, 0x07060302\ns_mov_b32 s29, 8192")
    a(f"v_cmp_ne_u32 vcc, 0, v{kp}")
    a(f"s_waitcnt vmcnt({npf})")
    stamp(a, 2)
    for e in range(2):
        for r in range(4):
            for hf in range(2): a(f"v_perm_b32 v{O+8*e+2*r+hf}, v{W+4*r+2*hf+1}, v{W+4*r+2*hf}, s{30+e}")
    for h in range(2): a(f"buffer_store_dwordx4 {vr(O+8+4*h,4)}, v{so2}, s[20:23], s29 offen offset:{1024*h}")
    a("s_and_b64 exec, exec, vcc")
    for h in range(2): a(f"buffer_store_dwordx4 {vr(O+4*h,4)}, v{so2}, s[20:23], 0 offen offset:{1024*h}")
    a(f"s_mov_b64 exec, -1\ns_cmp_lg_u32 s3, 0\ns_cbranch_scc1 {name}_nosym2")
    so2 = ad
    a(f"v_bfe_u32 v{t0}, v{jt}, 4, 1\nv_lshlrev_b32 v{so2}, 12, v{t0}\nv_bfe_u32 v{t0}, v{jt}, 9, 1\nv_lshl_add_u32 v{so2}, v{t0}, 11, v{so2}")
    a(f"v_bfe_u32 v{t0}, v{jt}, 6, 1\nv_lshl_add_u32 v{so2}, v{t0}, 10, v{so2}\nv_bfe_u32 v{t0}, v{jt}, 7, 2\nv_lshl_add_u32 v{so2}, v{t0}, 8, v{so2}")
    a(f"v_and_b32 v{t0}, 15, v{jt}\nv_lshl_add_u32 v{so2}, v{t0}, 4, v{so2}\nv_bfe_u32 v{t0}, v{jt}, 5, 1\nv_lshl_add_u32 v{so2}, v{t0}, 3, v{so2}")
    a(f"v_and_b32 v{t0}, 3, v{l}\nv_lshl_add_u32 v{so2}, v{t0}, 1, v{so2}\ns_lshl_b32 s26, s44, 22")
    a(f"v_lshlrev_b32 v{WS}, 16, v{WS}\nv_lshlrev_b32 v{t1}, 31, v{l}\nv_mov_b32 v{t0}, 0\nv_mov_b32 v{t0}, v{WS} row_shl:4 row_mask:0xf bank_mask:0xf")
    a(f"v_xor_b32 v{t0}, v{t0}, v{t1}\nv_add_f32 v{t0}, v{t0}, v{WS}\nv_mul_f32 v{t0}, 0.5, v{t0}"); a(cvt(t0, t0, t0))
    a(f"s_mov_b32 s28, 0x0f0f0f0f\ns_mov_b32 s29, s28\ns_mov_b64 exec, s[28:29]\nbuffer_store_short v{t0}, v{so2}, s[20:23], s26 offen\ns_mov_b64 exec, -1")
    a(f"{name}_nosym2:")
    if hooks: hooks(a, V, "k1prep1")
    stamp(a, 3); stamp_flush(a, 0, 4, W)
    a(f"{name}_end:\ns_endpgm")
    return a.finish(), max(nv_main, V.n), 16896

def dft_block(a, B, colf, slotf, tc, ts, ta, step, order):
    for T in range(2):
        colf(T)
        a(f"v_cvt_f32_u32 v{step}, v{step}\nv_mul_f32 v{step}, {fhex(1/32)}, v{step}")
        sincos(a, slotf, step, 8, tc, ts, ta)
        for t in range(2):
            for x, w in enumerate(order):
                src = tc if w == "C" else ts
                for k in range(2): a(cvt(B[T][t]+2*x+k, src+4*t+2*k, src+4*t+2*k+1, w == "N", w == "N"))

def gen_k2(name, hooks=None):
    a = Asm(); V = Alloc(1)
    a("s_load_dwordx2 s[10:11], s[0:1], 72\ns_load_dwordx4 s[48:51], s[0:1], 32")
    stamp(a, 0)
    l, j, g = lane_ids(a, V)
    a(f"s_cmp_gt_u32 s2, 256\ns_cbranch_scc1 {name}_end")
    a("s_and_b32 s20, s2, 7\ns_lshl_b32 s20, s20, 5\ns_lshr_b32 s21, s2, 3\ns_add_u32 s20, s20, s21\ns_cmp_eq_u32 s2, 256\ns_cselect_b32 s20, 256, s20")
    vo = V(); W = V(32, 4)
    a(f"s_lshl_b32 s21, s3, 12\ns_mov_b32 m0, s21\ns_lshl_b32 s22, s20, 14\ns_add_u32 s22, s22, s21\nv_lshlrev_b32 v{vo}, 4, v{l}")
    a("s_lshr_b32 s23, s3, 1\ns_xor_b32 s23, s23, s3\ns_and_b32 s23, s23, 1\ns_lshl_b32 s24, s20, 1\ns_add_u32 s23, s23, s24\ns_lshl_b32 s23, s23, 13\ns_add_u32 s24, s23, 4096")
    a("s_waitcnt lgkmcnt(0)")
    srd(a, 12, 10, Z1_SIZE, Z1_OFF); srd(a, 16, 10, WT_SIZE, WT_OFF)
    for n in range(4): a(f"buffer_load_dwordx4 v{vo}, s[12:15], s22 offen offset:{1024*n} lds")
    for n in range(8): a(f"buffer_load_dwordx4 {vr(W+4*n,4)}, v{vo}, s[16:19], s{23+n//4} offen offset:{1024*(n%4)}")
    nextra = hooks(a, V, "k2a") if hooks else 0
    stamp(a, 1)
    srd(a, 12, 10, Z2_SIZE, Z2_OFF)
    zt = V(2)
    a(f"s_cmp_lg_u32 s2, 1\ns_cbranch_scc1 {name}_nz\nv_lshlrev_b32 v{zt}, 4, v0\nv_add_u32 v{zt}, {CNT_OFF}, v{zt}\nv_mov_b32 v{zt+1}, 0\nglobal_store_dword v{zt}, v{zt+1}, s[10:11]\ns_waitcnt vmcnt(0)\n{name}_nz:")
    V.n -= 2
    sf = V(8); tc = V(8); ta = V(8); ts = V(8); step = V(); t0 = V()
    B = [[V(6) for _ in range(2)] for _ in range(2)]; BR = [[V(6) for _ in range(2)] for _ in range(2)]
    TWc = [[V(4) for _ in range(2)] for _ in range(2)]; TWs = [[V(4) for _ in range(2)] for _ in range(2)]
    MC = V(16); MS = V(16)
    a(f"v_lshlrev_b32 v{step}, 2, v{g}\nv_cvt_f32_u32 v{sf}, v{step}")
    for i in range(1, 4): a(f"v_add_f32 v{sf+i}, 1.0, v{sf+i-1}")
    for i in range(4): a(f"v_add_f32 v{sf+4+i}, {fhex(16.0)}, v{sf+i}")
    dft_block(a, B, lambda T: a(f"v_or_b32 v{step}, {16*T}, v{j}"), sf, tc, ts, ta, step, "NCS")
    ra = V(); xa = V(); pa = V(); so = V()
    a(f"v_bfe_u32 v{t0}, v{l}, 2, 2\nv_xor_b32 v{t0}, s3, v{t0}\nv_lshlrev_b32 v{t0}, 4, v{t0}\nv_lshl_add_u32 v{ra}, v{l}, 6, v{t0}")
    for T in range(2):
        a(f"v_or_b32 v{step}, {16*T}, v{j}\nv_cvt_f32_u32 v{step}, v{step}\nv_mul_f32 v{step}, {fhex(1/1024)}, v{step}")
        for i in range(8): a(f"v_mul_f32 v{ta+i}, v{sf+i}, v{step}")
        for i in range(8): a(f"v_cos_f32 v{TWc[T][i>>2]+(i&3)}, v{ta+i}\nv_sin_f32 v{TWs[T][i>>2]+(i&3)}, v{ta+i}")
    a(f"s_cmp_ge_u32 s3, 2\ns_cselect_b32 s25, {fhex(-1.0)}, {fhex(1.0)}\ns_mov_b32 s26, {fhex(1/64)}")
    for T in range(2):
        a(f"v_or_b32 v{step}, {16*T}, v{j}\nv_cvt_f32_u32 v{step}, v{step}\nv_mul_f32 v{step}, {fhex(1/2048)}, v{step}")
        for i in range(8): a(f"v_fma_f32 v{ta+i}, v{sf+i}, s26, v{step}")
        for i in range(8): a(f"v_cos_f32 v{tc+i}, v{ta+i}\nv_sin_f32 v{ts+i}, v{ta+i}")
        for i in range(8): a(f"v_mul_f32 v{MC+8*T+i}, s25, v{tc+i}\nv_mul_f32_e64 v{MS+8*T+i}, s25, -v{ts+i}")
    a("s_bfe_u32 s27, s20, 0x20001")
    def colr(T): a(f"v_xor_b32 v{step}, s27, v{j}\nv_or_b32 v{step}, {16*T}, v{step}")
    dft_block(a, BR, colr, sf, tc, ts, ta, step, "NCS")
    a(f"s_lshl_b32 s28, s3, 13\ns_add_u32 s28, s28, 16384\nv_add_u32 v{xa}, s28, v{vo}")
    a(f"s_xor_b32 s28, s3, 3\ns_lshl_b32 s28, s28, 13\ns_add_u32 s28, s28, 16384\nv_add_u32 v{pa}, s28, v{vo}")
    a(f"v_lshl_add_u32 v{t0}, v{j}, 3, v{g}\nv_mul_u32_u24 v{so}, {Z2_STRIDE}, v{t0}\ns_lshl_b32 s28, s20, 2\ns_add_u32 s28, s28, s3\ns_lshl_b32 s28, s28, 4\nv_add_u32 v{so}, s28, v{so}")
    for Tq in range(2):
        for Tp in range(2): a(f"s_mov_b32 s{32+2*Tq+Tp}, {(128*Tq+4*Tp)*Z2_STRIDE}")
    X = sf; D = V(32); E = V(32); tt = ta
    stamp(a, 2)
    a(f"s_waitcnt vmcnt({8+nextra})\ns_barrier")
    nextra += hooks(a, V, "k2b") if hooks else 0
    stamp(a, 3)
    for n in range(4): a(f"ds_read_b128 {vr(X+4*n,4)}, v{ra} offset:{4096*n}")
    acc = lambda base, x, y, part: base + ((x*2+y)*2+part)*4
    def stage(dst, data, cst, data_is_a, waits=None):
        o = []
        for x in range(2):
            for t in range(2):
                if waits: o.append(f"s_waitcnt lgkmcnt({3-2*x-t})")
                for y in range(2):
                    for part in range(2):
                        c = cst[y][t] + (2 if part == 0 else 0)
                        o.append(mfma(dst(x,y,part), data(x,t), c, t == 0) if data_is_a else mfma(dst(x,y,part), c, data(x,t), t == 0))
        return o
    def pack(dst, re, im):
        return [cvt(dst, re, re+1), cvt(dst+1, re+2, re+3), cvt(dst+2, im, im+1), cvt(dst+3, im+2, im+3)]
    D1 = lambda Tq, T1, part: acc(D, Tq, T1, part)
    a(stage(D1, lambda x, t: X+4*(2*x+t), B, True, waits=True))
    for T1 in range(2):
        for Tq in range(2):
            a(twiddle(D1(Tq,T1,0), D1(Tq,T1,1), TWc[T1][Tq], TWs[T1][Tq], tt)); a(pack(X+4*(2*T1+Tq), D1(Tq,T1,0), D1(Tq,T1,1)))
    D2 = lambda T1, T2, part: acc(E, T1, T2, part)
    a(stage(D2, lambda x, t: X+4*(2*x+t), B, False))
    for n in range(8): a(f"ds_write_b128 v{xa}, {vr(E+4*n,4)} offset:{1024*n}")
    u = ts
    stamp(a, 4)
    a(f"s_waitcnt vmcnt({nextra})")
    stamp(a, 5)
    for n in range(8):
        e0 = 2*n; w = W + 4*n
        for k in range(2):
            a(f"v_lshlrev_b32 v{u+k}, 16, v{w+2*k}\nv_and_b32 v{u+2+k}, 0xffff0000, v{w+2*k}\nv_lshlrev_b32 v{u+4+k}, 16, v{w+2*k+1}\nv_and_b32 v{u+6+k}, 0xffff0000, v{w+2*k+1}")
        a(f"v_pk_add_f32 {vr(w,2)}, {vr(u,2)}, {vr(u+4,2)}\nv_pk_add_f32 {vr(w+2,2)}, {vr(u+2,2)}, {vr(u+6,2)}")
        a(f"v_pk_add_f32 {vr(u,2)}, {vr(u,2)}, {vr(u+4,2)} neg_lo:[0,1] neg_hi:[0,1]\nv_pk_add_f32 {vr(u+2,2)}, {vr(u+2,2)}, {vr(u+6,2)} neg_lo:[0,1] neg_hi:[0,1]")
        a(f"v_pk_fma_f32 {vr(w,2)}, {vr(u,2)}, {vr(MS+e0,2)}, {vr(w,2)}\nv_pk_fma_f32 {vr(w+2,2)}, {vr(u+2,2)}, {vr(MS+e0,2)}, {vr(w+2,2)}")
        a(f"v_pk_mul_f32 {vr(MS+e0,2)}, {vr(u,2)}, {vr(MC+e0,2)}\nv_pk_mul_f32 {vr(MC+e0,2)}, {vr(u+2,2)}, {vr(MC+e0,2)}")
    a("s_waitcnt lgkmcnt(0)\ns_barrier")
    for n in range(8): a(f"ds_read_b128 {vr(D+4*n,4)}, v{pa} offset:{1024*n}")
    for T1 in range(2):
        for T2 in range(2):
            n = T1*2+T2
            a(f"s_waitcnt lgkmcnt({6-2*n})")
            for h in (0, 2):
                e0 = 4*n + h; ar_, ai, br, bi = vr(W+2*e0,2), vr(W+2*e0+2,2), vr(MS+e0,2), vr(MC+e0,2)
                wr, wi = vr(D2(T1,T2,0)+h,2), vr(D2(T1,T2,1)+h,2)
                orr, oi = vr(acc(D,T1,T2,0)+h,2), vr(acc(D,T1,T2,1)+h,2)
                x, y = vr(tt+h,2), vr(tt+4+h,2)
                a(f"v_pk_mul_f32 {x}, {ar_}, {wr}\nv_pk_mul_f32 {y}, {ar_}, {wi} neg_lo:[1,0] neg_hi:[1,0]")
                a(f"v_pk_fma_f32 {x}, {ai}, {wi}, {x} neg_lo:[1,0,0] neg_hi:[1,0,0]\nv_pk_fma_f32 {y}, {ai}, {wr}, {y} neg_lo:[1,0,0] neg_hi:[1,0,0]")
                a(f"v_pk_fma_f32 {x}, {br}, {oi}, {x} neg_lo:[1,0,0] neg_hi:[1,0,0]\nv_pk_fma_f32 {y}, {br}, {orr}, {y} neg_lo:[1,0,0] neg_hi:[1,0,0]")
                a(f"v_pk_fma_f32 {x}, {bi}, {orr}, {x} neg_lo:[1,0,0] neg_hi:[1,0,0]\nv_pk_fma_f32 {y}, {bi}, {oi}, {y}")
            a(pack(X+4*n, tt, tt+4))
    if hooks: hooks(a, V, "k2c")
    stamp(a, 6)
    DA = lambda T1, Tq, part: acc(D, T1, Tq, part)
    a(stage(DA, lambda x, t: X+4*(2*x+t), B, True))
    for Tq in range(2):
        for T1 in range(2):
            a(twiddle(DA(T1,Tq,0), DA(T1,Tq,1), TWc[Tq][T1], TWs[Tq][T1], tt)); a(pack(X+4*(2*Tq+T1), DA(T1,Tq,0), DA(T1,Tq,1)))
    DB = lambda Tq, Tp, part: acc(E, Tq, Tp, part)
    a(stage(DB, lambda x, t: X+4*(2*x+t), BR, False))
    for Tq in range(2):
        for Tp in range(2):
            o = D + 4*(2*Tq+Tp)
            for r in range(4): a(cvt(o+r, DB(Tq,Tp,0)+r, DB(Tq,Tp,1)+r, False, True))
            a(f"buffer_store_dwordx4 {vr(o,4)}, v{so}, s[12:15], s{32+2*Tq+Tp} offen")
    stamp(a, 7); stamp_flush(a, 1, 8, W)
    a(f"{name}_end:\ns_endpgm")
    return a.finish(), V.n, 16384 + 32768

def gen_p3(a, name, hooks, LB=0, fl=""):
    V = Alloc(1)
    l, j, g = lane_ids(a, V)
    a(f"s_cmp_ge_u32 s2, 256\ns_cbranch_scc1 {name}_end")
    a("s_and_b32 s20, s2, 7\ns_lshr_b32 s21, s2, 3")
    a("s_lshl_b32 s22, s20, 7\ns_lshl_b32 s23, s3, 5\ns_add_u32 s22, s22, s23\ns_add_u32 s22, s22, s21\ns_lshl_b32 s22, s22, 12")
    vo = V(); xo = V(); XR = V(16, 4)
    a(f"s_lshl_b32 s23, s3, 12\ns_mul_i32 s24, s2, {Z2_STRIDE}\ns_add_u32 s25, s24, 16384\ns_add_u32 s24, s24, s23\ns_add_u32 s23, s23, {LB}\ns_mov_b32 m0, s23\nv_lshlrev_b32 v{vo}, 4, v{l}")
    a(f"v_lshlrev_b32 v{xo}, 6, v{j}\nv_lshl_add_u32 v{xo}, v{g}, 4, v{xo}")
    a("s_waitcnt lgkmcnt(0)")
    srd(a, 12, 10, Z2_SIZE, Z2_OFF); srd(a, 16, 4, 2048 * 2048)
    for n in range(4): a(f"buffer_load_dwordx4 v{vo}, s[12:15], s24 offen offset:{1024*n} lds")
    a(f"s_mov_b32 m0, {LB+16384}\ns_mov_b64 exec, 15\nbuffer_load_dwordx4 v{vo}, s[12:15], s25 offen lds\ns_mov_b64 exec, -1")
    for n in range(4): a(f"buffer_load_dwordx4 {vr(XR+4*n,4)}, v{xo}, s[16:19], s22 offen offset:{1024*n}")
    nextra = hooks(a, V, "k3a") if hooks else 0
    stamp(a, 1)
    srd(a, 12, 10, H_SIZE, H_OFF); srd(a, 16, 10, HN_SIZE, HN_OFF)
    sf = V(8); kf = V(8); ta = V(8); tc = V(8); ts = V(8); step = V(); t0 = V(); t1 = V(); sg = V()
    B1 = [[[V(4) for _ in range(2)] for _ in range(2)] for _ in range(2)]
    B2 = [[V(6) for _ in range(2)] for _ in range(2)]
    TWc = [[V(4) for _ in range(2)] for _ in range(2)]; TWs = [[V(4) for _ in range(2)] for _ in range(2)]
    a(f"v_lshlrev_b32 v{step}, 2, v{g}\nv_cvt_f32_u32 v{sf}, v{step}")
    for i in range(1, 4): a(f"v_add_f32 v{sf+i}, 1.0, v{sf+i-1}")
    for i in range(4): a(f"v_add_f32 v{sf+4+i}, {fhex(16.0)}, v{sf+i}")
    a(f"v_and_b32 v{t0}, 1, v{g}\nv_cvt_f32_u32 v{t1}, v{t0}\nv_fma_f32 v{sg}, v{t1}, -2.0, 1.0\nv_mul_f32 v{t1}, {fhex(31.0)}, v{t1}")
    a(f"v_lshrrev_b32 v{t0}, 1, v{g}\nv_lshlrev_b32 v{t0}, 2, v{t0}\nv_cvt_f32_u32 v{kf}, v{t0}\nv_fma_f32 v{kf}, v{kf}, v{sg}, v{t1}")
    for i in range(1, 4): a(f"v_add_f32 v{kf+i}, v{kf+i-1}, v{sg}")
    a(f"v_mul_f32 v{t1}, {fhex(8.0)}, v{sg}")
    for i in range(4): a(f"v_add_f32 v{kf+4+i}, v{kf+i}, v{t1}")
    a(f"s_mov_b32 s26, {fhex(2.0**-21)}")
    for T in range(2):
        a(f"v_lshrrev_b32 v{step}, 2, v{j}\nv_lshlrev_b32 v{step}, 3, v{step}\nv_and_or_b32 v{step}, v{j}, 3, v{step}")
        if T: a(f"v_or_b32 v{step}, 4, v{step}")
        a(f"v_cvt_f32_u32 v{step}, v{step}\nv_mul_f32 v{step}, {fhex(1/32)}, v{step}")
        sincos(a, kf, step, 8, tc, ts, ta)
        for i in range(8):
            a(f"v_mul_f32 v{t0}, v{sg}, v{ts+i}\nv_mul_f32 v{t1}, v{sg}, v{tc+i}")
            a(cvt(B1[T][i>>2][0]+(i&3), tc+i, t0, False, True)); a(cvt(B1[T][i>>2][1]+(i&3), ts+i, t1))
        a(f"v_mul_f32 v{step}, {fhex(1/32)}, v{step}")
        sincos(a, sf, step, 8, tc, ts, ta)
        for i in range(8): a(f"v_mul_f32 v{TWc[T][i>>2]+(i&3)}, s26, v{tc+i}\nv_mul_f32 v{TWs[T][i>>2]+(i&3)}, s26, v{ts+i}")
    dft_block(a, B2, lambda T: a(f"v_or_b32 v{step}, {16*T}, v{j}"), sf, tc, ts, ta, step, "SCN")
    ra = V(2); wa = V(); so = V()
    a(f"v_and_b32 v{t1}, 1, v{g}\nv_cmp_eq_u32 vcc, 1, v{t1}\nv_lshrrev_b32 v{sg}, 1, v{g}\nv_lshlrev_b32 v{sg}, 7, v{sg}")
    for Tk in range(2):
        a(f"v_add_u32 v{t0}, {16*Tk}, v{j}\nv_sub_u32 v{step}, 32, v{t0}\nv_cndmask_b32 v{t0}, v{t0}, v{step}, vcc\nv_add_u32 v{t0}, v{t0}, v{sg}")
        a(f"v_lshrrev_b32 v{step}, 1, v{t0}\nv_lshlrev_b32 v{ra+Tk}, 6, v{step}")
        a(f"v_and_b32 v{step}, 1, v{t0}\nv_mul_u32_u24 v{ta}, 3, v{t1}\nv_xor_b32 v{step}, v{step}, v{ta}\nv_lshl_add_u32 v{ra+Tk}, v{step}, 4, v{ra+Tk}")
        a(f"v_bfe_u32 v{step}, v{t0}, 2, 2\nv_xor_b32 v{step}, s3, v{step}\nv_lshl_add_u32 v{ra+Tk}, v{step}, 2, v{ra+Tk}")
        if LB: a(f"v_add_u32 v{ra+Tk}, {LB}, v{ra+Tk}")
    HNL = 17408
    a(f"s_lshl_b32 s27, s3, 1\nv_and_b32 v{t0}, 7, v{j}\nv_xor_b32 v{t0}, s27, v{t0}\nv_lshlrev_b32 v{t0}, 4, v{t0}")
    a(f"v_lshl_add_u32 v{t0}, v{g}, 7, v{t0}\nv_lshl_add_u32 v{wa}, v{j}, 9, v{t0}")
    if LB: a(f"v_add_u32 v{wa}, {LB}, v{wa}")
    sox = V(4)
    a(f"v_lshrrev_b32 v{t0}, 5, v{l}\nv_and_b32 v{t1}, 7, v{l}\nv_xor_b32 v{t1}, v{t1}, v{t0}\nv_lshlrev_b32 v{so}, 4, v{t1}")
    a(f"v_bfe_u32 v{t1}, v{l}, 3, 2\nv_lshl_add_u32 v{so}, v{t1}, 8, v{so}\nv_lshl_add_u32 v{so}, v{t0}, 10, v{so}")
    for n in range(4): a(f"v_xor_b32 v{sox+n}, {32*n}, v{so}")
    a("s_lshl_b32 s28, s20, 4\ns_lshr_b32 s29, s21, 1\ns_add_u32 s28, s28, s29\ns_lshl_b32 s28, s28, 15\ns_and_b32 s29, s21, 1\ns_lshl_b32 s29, s29, 7\ns_add_u32 s28, s28, s29")
    a("s_lshl_b32 s29, s3, 13\ns_add_u32 s28, s28, s29\ns_add_u32 s29, s28, 4096")
    a(f"v_add_u32 v{vo}, s23, v{vo}")
    X = sf; D = V(32); E = V(32); tt = ta
    stamp(a, 2)
    a(f"s_waitcnt vmcnt({4+nextra})\ns_barrier")
    nextra += hooks(a, V, "k3b") if hooks else 0
    stamp(a, 3)
    for Tk in range(2):
        for m in (0, 1, 2, 3, 8, 9, 10, 11): a(f"ds_read_b32 v{X+8*Tk+(m&3)+4*(m>>3)}, v{ra+Tk} offset:{1024*m}")
    acc = lambda base, x, y, part: base + ((x*2+y)*2+part)*4
    D1 = lambda Tk, T1, part: acc(D, Tk, T1, part)
    for Tk in range(2):
        for t in range(2):
            a(f"s_waitcnt lgkmcnt({12-8*Tk-4*t})")
            for T1 in range(2):
                for part in range(2): a(mfma(D1(Tk,T1,part), X+8*Tk+4*t, B1[T1][t][part], t == 0))
    D2 = lambda T1, T2, part: E + ((part*2+T2)*2+T1)*4
    U = X
    for T1 in range(2):
        for Tk in range(2):
            re, im = D1(Tk,T1,0), D1(Tk,T1,1); o = U+4*(2*T1+Tk)
            a(twiddle(re, im, TWc[T1][Tk], TWs[T1][Tk], tt, inverse=True))
            a([cvt(o, re, re+1), cvt(o+1, re+2, re+3), cvt(o+2, im, im+1), cvt(o+3, im+2, im+3)])
        for Tk in range(2):
            for T2 in range(2):
                for part in range(2): a(mfma(D2(T1,T2,part), U+4*(2*T1+Tk), B2[T2][Tk] + (2 if part == 0 else 0), Tk == 0))
    stamp(a, 4)
    a(f"s_waitcnt vmcnt({nextra})")
    hooks(a, V, "k3c")
    stamp(a, 5)
    for k in range(16): a(f"v_lshlrev_b32 v{D+2*k}, 16, v{XR+k}\nv_and_b32 v{D+2*k+1}, 0xffff0000, v{XR+k}")
    st = tc; rn = ts
    for k in range(16):
        e = k // 8; p = vr(E+2*k, 2); s_ = vr(st+4*e, 2); q_ = vr(st+4*e+2, 2)
        a(f"v_pk_add_f32 {p}, {p}, {vr(D+2*k,2)}")
        if k % 8 == 0: a(f"v_pk_mul_f32 {q_}, {p}, {p}")
        elif k % 8 == 1: a(f"v_pk_add_f32 {s_}, {p}, {vr(E+2*k-2,2)}\nv_pk_fma_f32 {q_}, {p}, {p}, {q_}")
        else: a(f"v_pk_add_f32 {s_}, {p}, {s_}\nv_pk_fma_f32 {q_}, {p}, {p}, {q_}")
    for n in range(4):
        for k in range(4): a(cvt(XR+4*n+k, E+8*n+2*k, E+8*n+2*k+1))
        a(f"buffer_store_dwordx4 {vr(XR+4*n,4)}, v{xo}, s[12:15], s22 offen offset:{1024*n} {fl}")
    hooks(a, V, "k3d")
    row_stats(a, st, st+2, st+4, st+6, rn, rn+2, tt)
    a(f"v_xor_b32 v{t0}, 16, v{wa}")
    for n in range(4):
        e, T2 = n >> 1, n & 1
        for k in range(4): a(norm(E+8*n+2*k, rn+2*e))
        for k in range(4): a(cvt(X+4*n+k, E+8*n+2*k, E+8*n+2*k+1))
        a(f"ds_write_b128 v{t0 if e else wa}, {vr(X+4*n,4)} offset:{HNL+8192*T2}")
    a("s_waitcnt lgkmcnt(0)\ns_barrier")
    for n in range(4): a(f"ds_read_b128 {vr(D+4*n,4)}, v{vo} offset:{HNL+1024*n}")
    for n in range(4): a(f"s_waitcnt lgkmcnt({3-n})\nbuffer_store_dwordx4 {vr(D+4*n,4)}, v{sox+n}, s[16:19], s{28+n//2} offen offset:{2048*(n&1)} {fl}")
    return V.n
```

```python
from asmgen import *
from gen_fft import MF, cvt, gen_p3, HN_OFF, HN_SIZE, HH_OFF, HH_SIZE, H_OFF, H_SIZE, CNT_OFF
VAR = {}
WBYTES = 1024 * 7168

def signal_wait(a, name, add_expr, poll_expr, vt, between=None):
    a(f"s_barrier\ns_cmp_lg_u32 s3, 0\ns_cbranch_scc1 {name}_skip1")
    a(f"{add_expr}s_lshl_b32 s63, s63, 8\ns_add_u32 s63, s63, {CNT_OFF}\nv_mov_b32 v{vt}, s63\nv_mov_b32 v{vt+1}, 1\ns_mov_b64 exec, 1")
    a(f"global_atomic_add v{vt}, v{vt+1}, s[10:11] sc1\ns_mov_b64 exec, -1\n{name}_skip1:")
    if between: between()
    a(f"s_cmp_lg_u32 s3, 0\ns_cbranch_scc1 {name}_skip2")
    a(f"{poll_expr}s_lshl_b32 s63, s63, 8\ns_add_u32 s63, s63, {CNT_OFF}\nv_mov_b32 v{vt}, s63\ns_mov_b32 s63, 0x40000\n{name}_poll:")
    a(f"global_load_dword v{vt+1}, v{vt}, s[10:11] sc1\ns_waitcnt vmcnt(0)\nv_cmp_ne_u32 vcc, 32, v{vt+1}\ns_sub_u32 s63, s63, 1\ns_cbranch_scc1 {name}_skip2")
    a(f"s_cbranch_vccz {name}_skip2\ns_sleep 1\ns_branch {name}_poll\n{name}_skip2:\ns_barrier")

def gen_fused(name, hooks=None):
    a = Asm()
    STG = 28672; TORD = [6, 0, 1, 2, 3, 4, 5]
    acc = lambda t, mat, m: ((t*2+mat)*4+m)*4
    P = Alloc(232)
    l, vA, vB, vX = P(), P(), P(), P()
    vD = P(7); t0, t1, t2 = P(), P(), P(); vP, vPd = P(), P(); vD5 = P(2); vS = P(2); vH = P()
    WR = lambda i: 4*(i % 4)
    XS = lambda ks, m: 16 + 16*(ks % 4) + 4*m
    a("s_load_dwordx2 s[4:5], s[0:1], 0\ns_load_dwordx4 s[36:39], s[0:1], 32\ns_load_dwordx4 s[56:59], s[0:1], 48\ns_load_dwordx2 s[10:11], s[0:1], 72")
    stamp(a, 0)
    def st4(dst, pos):
        return (f"s_and_b32 s63, s{pos}, 3\ns_cmp_eq_u32 s63, s4\ns_cselect_b32 s63, 4, 0\ns_add_u32 s{dst}, s{pos}, s63\ns_and_b32 s{dst}, s{dst}, 15\n")
    def dma4(buf_expr):
        o = []
        for i in range(7):
            pre = ""
            if i == 0: pre = f"{st4(51, 5)}s_mul_i32 s51, s51, 458752\ns_add_u32 s5, s5, 1\n{buf_expr}s_mov_b32 m0, s52\n"
            if i == 4: pre = "s_add_u32 s52, s52, 4096\ns_mov_b32 m0, s52\n"
            post = ""
            o.append((pre, f"buffer_load_dwordx4 v{vD+i}, s[44:47], s51 offen offset:{1024*(i&3)} {VAR.get('wfl', '').replace('_', ' ')} lds{post}"))
        return o
    def early(a_, V, where):
        if where == VAR.get("d0at", "k3b") and where == VAR.get("d1at", "k3c"):
            for p, q in dma4("s_mov_b32 s52, s50\n") + dma4(f"s_add_u32 s52, s50, {STG}\n"): a(p + q)
            return 14
        if where == VAR.get("d0at", "k3b"):
            for p, q in dma4("s_mov_b32 s52, s50\n"): a(p + q)
            return 7
        if where == VAR.get("d1at", "k3c"):
            for p, q in dma4(f"s_add_u32 s52, s50, {STG}\n"): a(p + q)
            return 7
        if where != "k3a": return 0
        a("s_mov_b32 s6, s36\ns_mov_b32 s7, s37\ns_mov_b32 s8, s38\ns_mov_b32 s9, s39")
        a(f"v_and_b32 v{l}, 63, v0")
        a("s_and_b32 s48, s2, 7\ns_lshl_b32 s48, s48, 2\ns_bfe_u32 s49, s2, 0x20003\ns_add_u32 s48, s48, s49\ns_lshr_b32 s49, s2, 5")
        a("s_and_b32 s30, s3, 1\ns_mul_i32 s30, s30, 229376\ns_mul_i32 s31, s48, 224\ns_add_u32 s30, s30, s31\ns_movk_i32 s31, 4682\ns_movk_i32 s32, 7168")
        for i in range(7):
            a(f"v_add_u32 v{t0}, {64*i}, v{l}\nv_mul_u32_u24 v{t1}, s31, v{t0}\nv_lshrrev_b32 v{t1}, 16, v{t1}")
            a(f"v_mul_u32_u24 v{t2}, 14, v{t1}\nv_sub_u32 v{t0}, v{t0}, v{t2}")
            a(f"v_bfe_u32 v{t2}, v{t1}, 2, 1\nv_bfe_u32 v{vD+i}, v{t1}, 3, 1\nv_xor_b32 v{t2}, v{t2}, v{vD+i}\nv_mul_u32_u24 v{t2}, 12, v{t2}\nv_xor_b32 v{t1}, v{t1}, v{t2}")
            a(f"v_mul_u32_u24 v{t1}, s32, v{t1}\nv_lshl_add_u32 v{t1}, v{t0}, 4, v{t1}\nv_add_u32 v{vD+i}, s30, v{t1}")
            if i & 3: a(f"v_subrev_u32 v{vD+i}, {1024*(i&3)}, v{vD+i}")
        a("s_add_u32 s4, s48, s49\ns_and_b32 s4, s4, 3\ns_mov_b32 s5, 0" if VAR.get("skew4", 0) else "s_mov_b32 s4, 7\ns_mov_b32 s5, 0")
        a(f"s_mul_i32 s50, s3, 7168\ns_cmp_lt_u32 s3, 2\ns_cselect_b32 s44, s6, s8\ns_cselect_b32 s45, s7, s9\ns_mov_b32 s46, {WBYTES}\ns_mov_b32 s47, 0x20000")
        if not VAR.get("tlb", 0): return 0
        a("s_lshl_b32 s30, s49, 4\ns_lshl_b32 s31, s3, 2\ns_add_u32 s30, s30, s31\ns_mul_i32 s30, s30, 114688\ns_lshr_b32 s31, s48, 1\ns_mul_i32 s31, s31, 7\ns_and_b32 s32, s48, 1\ns_lshl_b32 s32, s32, 2\ns_add_u32 s31, s31, s32\ns_lshl_b32 s31, s31, 10")
        a(f"s_add_u32 s30, s30, s31\ns_add_u32 s30, s30, {HH_OFF}\nv_and_b32 v{t0}, 3, v{l}\nv_mul_u32_u24 v{t0}, 114688, v{t0}\nv_add_u32 v{t0}, s30, v{t0}\nglobal_load_dword v{vPd}, v{t0}, s[10:11]")
        a(f"s_bfe_u32 s30, s2, 0x20001\ns_lshl_b32 s30, s30, 1\ns_lshr_b32 s31, s2, 7\ns_add_u32 s30, s30, s31\ns_lshl_b32 s30, s30, 19\nv_mov_b32 v{t0}, s30\nglobal_load_dword v{vPd}, v{t0}, s[58:59]")
        return 2
    nv3 = gen_p3(a, name, early, LB=4*STG, fl="sc1")
    assert nv3 <= 232
    stamp(a, 6)
    a("s_waitcnt vmcnt(0)")
    stamp(a, 7)
    def setup4():
        a(f"v_lshlrev_b32 v{vX}, 4, v{l}")
        a("s_lshl_b32 s28, s49, 4\ns_lshl_b32 s29, s3, 2\ns_add_u32 s28, s28, s29")
        a("s_lshl_b32 s43, s28, 15\ns_mov_b32 s31, 0")
        srd(a, 16, 10, HN_SIZE, HN_OFF)
        a(f"s_lshl_b32 s24, s2, 2\ns_add_u32 s24, s24, s3\nv_lshlrev_b32 v{vP}, 10, v{l}\nv_add_lshl_u32 v{vP}, v{vP}, s24, 7\ns_mov_b32 s22, {WBYTES}\ns_mov_b32 s23, 0x20000")
        a(f"v_lshrrev_b32 v{t0}, 5, v{l}\nv_lshlrev_b32 v{t0}, 4, v{t0}\nv_bfe_u32 v{t1}, v{l}, 4, 1\nv_lshl_add_u32 v{t0}, v{t1}, 2, v{t0}\nv_bfe_u32 v{t1}, v{l}, 2, 2\nv_add_u32 v{t0}, v{t0}, v{t1}")
        a(f"v_mul_u32_u24 v{t0}, 224, v{t0}\nv_and_b32 v{t1}, 3, v{l}\nv_lshl_add_u32 v{t0}, v{t1}, 3, v{t0}")
        a(f"s_and_b32 s36, s48, 1\ns_lshl_b32 s37, s36, 5\nv_add_u32 v{vA}, s37, v{t0}\ns_cmp_eq_u32 s36, 0\ns_cselect_b32 s37, 192, 0\nv_add_u32 v{vB}, s37, v{t0}")
        a(f"v_bfe_u32 v{t0}, v{l}, 4, 1\nv_lshrrev_b32 v{t1}, 5, v{l}\nv_and_b32 v{t2}, 15, v{l}\nv_lshlrev_b32 v{t2}, 4, v{t2}\nv_lshl_add_u32 v{t2}, v{t1}, 8, v{t2}")
        a(f"v_lshl_add_u32 v{vS}, v{t0}, 9, v{t2}\nv_mul_u32_u24 v{t0}, 114688, v{t0}\nv_add_u32 v{vS+1}, v{t0}, v{t2}")
        a("s_lshr_b32 s37, s48, 1\ns_mul_i32 s37, s37, 7\ns_add_u32 s41, s37, 3\ns_lshl_b32 s42, s36, 2\ns_add_u32 s37, s37, s42\ns_lshl_b32 s37, s37, 10\ns_lshl_b32 s41, s41, 10\ns_lshl_b32 s42, s36, 9\ns_add_u32 s41, s41, s42")
        a("s_mul_i32 s28, s28, 114688\ns_add_u32 s37, s37, s28\ns_add_u32 s41, s41, s28\ns_add_u32 s42, s41, 229376")
        a("s_add_u32 s28, s37, 114688\ns_add_u32 s29, s37, 229376\ns_add_u32 s30, s37, 344064")
        a("s_bfe_u32 s25, s2, 0x20001\ns_lshl_b32 s25, s25, 2\ns_lshr_b32 s60, s2, 6\ns_add_u32 s25, s25, s60")
        a("s_and_b32 s27, s2, 1\ns_lshl_b32 s27, s27, 3\ns_bfe_u32 s61, s2, 0x30003\ns_add_u32 s27, s27, s61\ns_lshl_b32 s27, s27, 7")
        a("s_add_u32 s60, s60, s61\ns_and_b32 s60, s60, 3\ns_lshl_b32 s61, s3, 12\ns_mov_b32 s53, 0")
        a(f"v_lshrrev_b32 v{t0}, 3, v{l}\nv_and_b32 v{t1}, 2, v{t0}\nv_and_b32 v{t2}, 7, v{l}\nv_xor_b32 v{t2}, v{t2}, v{t1}\nv_lshlrev_b32 v{t2}, 4, v{t2}\nv_lshl_add_u32 v{t2}, v{t0}, 11, v{t2}")
        a(f"s_lshl_b32 s26, s3, 16\ns_add_u32 s26, s26, s27\nv_add_u32 v{vD5}, s26, v{t2}\nv_xor_b32 v{vD5+1}, 64, v{vD5}")
        srd(a, 12, 56, 3584 * 2048)
        for r in range(224): a(f"v_mov_b32 v{r}, 0")
    signal_wait(a, name + "_a", "s_and_b32 s63, s2, 7\n", "s_mov_b32 s63, s49\n", t0, setup4)
    stamp(a, 8)
    fl = "sc1"
    def xload(ks):
        o = [("", f"buffer_load_dwordx4 {ar(XS(ks,m),4)}, v{vX}, s[16:19], s{32+m} offen offset:{1024*(ks&1)} {fl}") for m in range(4)]
        if not ks & 1: o[0] = (st4(32, 31) + "s_lshl_b32 s32, s32, 11\ns_add_u32 s32, s32, s43\ns_add_u32 s33, s32, 0x8000\ns_add_u32 s34, s32, 0x10000\ns_add_u32 s35, s32, 0x18000\ns_add_u32 s31, s31, 1\n", o[0][1])
        return o
    flat = lambda o: [p + q for p, q in o]
    dummy = f"buffer_load_dword v{vPd}, v{vX}, s[20:23], s22 offen"
    a("s_mov_b32 s20, s6\ns_mov_b32 s21, s7")
    a(flat(xload(0))); a(flat(xload(1))); a([dummy] * 7); a(flat(xload(2)))
    def frag(ks, t, mat, ring):
        off = (ks >> 1) * STG + mat * 14336 + (ks & 1) * 7168 + (32 * t if t < 6 else 0)
        return [f"ds_read_b64_tr_b16 {ar(WR(ring)+2*h,2)}, v{vB if t == 6 else vA} offset:{off+1792*h}" for h in range(2)]
    def wread(idx): return frag((idx // 14) % 4, TORD[(idx % 14) >> 1], idx & 1, idx)
    def mms(ks, t, mat, ring):
        mm = [f"{MF} {vr(acc(t,mat,m),4)}, {ar(WR(ring),4)}, {ar(XS(ks,m),4)}, {vr(acc(t,mat,m),4)}" for m in range(4)]
        return mm[::-1] if ring & 1 else mm
    for i in range(3): a(wread(i))
    sched = dict((int(x[0]), x[1]) for x in VAR.get("pf", "0G_1U_3D").split("_") if x)
    touch_next = f"s_mov_b32 s24, {WBYTES}\n" + "".join(
        f"s_cmp_eq_u32 s39, {it}\ns_cselect_b32 s20, s{p}, s20\ns_cselect_b32 s21, s{p+1}, s21\ns_cselect_b32 s24, {0 if w == 'D' else 1 << 22}, s24\n"
        for it, w in sched.items() for p in [{"G": 6, "U": 8, "D": 56}[w]])
    touch = f"buffer_load_dword v{vPd}, v{vP}, s[20:23], s24 offen"
    a(f"s_mov_b32 s39, 0\ns_mov_b32 s40, {2*STG}\n{name}_loop4:")
    for ks in range(4):
        extra = xload(ks+3)
        if ks == 0: extra += dma4("s_add_u32 s52, s50, s40\n")
        if ks == 2: extra += dma4(f"s_add_u32 s52, s50, s40\ns_add_u32 s52, s52, {STG}\ns_xor_b32 s40, s40, {2*STG}\n")
        if ks == 1: extra.append((touch_next, touch))
        for n in range(14):
            idx = ks*14 + n
            a(f"s_waitcnt vmcnt({[15, 22, 16, 23][ks]}) lgkmcnt(4)" if n == 0 else "s_waitcnt lgkmcnt(4)")
            mm = mms(ks, TORD[n >> 1], n & 1, idx); rd = wread(idx+3)
            a(mm[0])
            if n == 11 and ks & 1:
                a("s_waitcnt vmcnt(19)\ns_barrier")
                if ks == 3: a(f"v_xor_b32 v{vA}, {2*STG}, v{vA}\nv_xor_b32 v{vB}, {2*STG}, v{vB}")
            a(rd[0]); a(mm[1]); a(rd[1])
            e = extra.pop(0) if extra else None
            if e: a(e[0])
            a(mm[2])
            if e: a(e[1])
            if idx == 55: a("s_add_u32 s39, s39, 1\ns_cmp_lg_u32 s39, 7")
            a(mm[3])
        assert not extra
    a(f"s_cbranch_scc1 {name}_loop4")
    stamp(a, 9)
    def stage_of(dst, pos):
        return (f"s_and_b32 s63, s{pos}, 3\ns_cmp_eq_u32 s63, s60\ns_cselect_b32 s63, 4, 0\ns_add_u32 s{dst}, s{pos}, s63\n"
                f"s_cmp_ge_u32 s{dst}, 28\ns_cselect_b32 s63, 28, 0\ns_sub_u32 s{dst}, s{dst}, s63\ns_cmp_ge_u32 s{pos}, 28\ns_cselect_b32 s{dst}, 28, s{dst}\n")
    def dma5(i):
        pre = (stage_of(54, 53) + "s_lshl_b32 s54, s54, 18\ns_and_b32 s55, s53, 3\ns_lshl_b32 s55, s55, 14\ns_add_u32 s55, s55, s61\ns_add_u32 s53, s53, 1\n") if i == 0 else "s_add_u32 s54, s54, 16384\ns_add_u32 s55, s55, 1024\n"
        return pre + f"s_mov_b32 m0, s55\nbuffer_load_dwordx4 v{vD5+(i&1)}, s[12:15], s54 offen lds"
    seq = [(6, k) for k in range(3)] + [(0, k) for k in range(3)] + [(6, 3), (0, 3)] + [(t, k) for t in range(1, 6) for k in range(4)]
    seq = [(t, k, mat) for t, k in seq for mat in range(2)]
    vm = ["X0"] * 4 + ["T"] + ["X1"] * 4 + ["D"] * 7 + ["X2"] * 4
    def vwait(tag): return len(vm) - 1 - max(i for i, x in enumerate(vm) if x == tag)
    a(flat(xload(3))); vm += ["X3"] * 4
    srd(a, 16, 10, HH_SIZE, HH_OFF)
    a(frag(seq[2][1], seq[2][0], seq[2][2], 2))
    def product(t):
        o = []
        for m in range(4):
            g_, u_ = acc(t,0,m), acc(t,1,m)
            o += [f"v_mul_f32 v{g_+r}, v{g_+r}, v{u_+r}" for r in range(4)]
            d = (acc(t & ~1, 1, m) + 2*(t & 1)) if t < 6 else (acc(6, 1, m & ~1) + 2*(m & 1))
            if t < 6 and not t & 1 or t == 6 and not m & 1: o += [cvt(g_, g_, g_+1), cvt(g_+1, g_+2, g_+3)]
            else:
                p = acc(t-1, 0, m) if t < 6 else acc(6, 0, m-1)
                o += [cvt(p+2, g_, g_+1), cvt(p+3, g_+2, g_+3), f"v_permlane16_swap_b32 v{p}, v{p+2}", f"v_permlane16_swap_b32 v{p+1}, v{p+3}"]
                if t < 6: o.append(f"buffer_store_dwordx4 {vr(p,4)}, v{vS}, s[16:19], s{[37,28,29,30][m]} offen offset:{1024*(t>>1)} sc1")
                else: o.append(f"buffer_store_dwordx4 {vr(p,4)}, v{vS+1}, s[16:19], s{41+(m>>1)} offen sc1")
        return o
    fill = []; seen = set(); outstanding = 4 + 2 + 2
    for i, (t, k, mat) in enumerate(seq):
        lg = 4 if i + 2 < len(seq) else 2 * (len(seq) - 1 - i)
        w = f"s_waitcnt lgkmcnt({lg})"
        if k not in seen: seen.add(k); w = f"s_waitcnt vmcnt({vwait('X'+str(k))}) lgkmcnt({lg})"
        a(w)
        mm = mms(k, t, mat, i)
        rd = frag(seq[i+3][1], seq[i+3][0], seq[i+3][2], i+3) if i + 3 < len(seq) else ["", ""]
        a(mm[0])
        if i == 1:
            a(f"s_waitcnt vmcnt({vwait('D')})\ns_barrier")
            fill += [dma5(q % 4) for q in range(8)]
        def put(n):
            for _ in range(n):
                if fill:
                    x = fill.pop(0); a(x)
                    if "buffer_" in x: vm.append("o")
        a(rd[0]); a(mm[1]); a(rd[1]); put(1); a(mm[2]); put(2); a(mm[3])
        if i + 1 < len(seq): put(1)
        if k == 3 and mat == 1:
            if i + 1 < len(seq): fill += ["s_nop 0"] * 2
            fill += product(t)
    a(fill)
    stamp(a, 10)
    a("s_waitcnt vmcnt(0)")
    stamp(a, 11)
    V = Alloc(0, 232)
    ACC = V(32); acc5 = lambda n, m: ACC + (m*4+n)*4
    HS = V(64); XS5 = lambda ks, m: HS + 8*(ks % 8) + 4*m
    WF = V(32); WR5 = lambda i: WF + 4*(i % 8)
    HR = V(16); HF = V(32); vO = V(2); vA5 = V(4)
    def setup5():
        a("s_lshl_b32 s28, s25, 3\ns_lshl_b32 s29, s3, 1\ns_add_u32 s28, s28, s29\ns_mul_i32 s29, s28, 114688")
        for m in range(2):
            a(f"s_add_u32 s31, s28, {m}\ns_lshr_b32 s32, s31, 4\ns_lshl_b32 s32, s32, 8\ns_and_b32 s31, s31, 15\ns_lshl_b32 s31, s31, 2\ns_add_u32 s31, s31, s32")
            a(f"v_bfe_u32 v{t2}, v{l}, 3, 1\nv_lshlrev_b32 v{t2}, 1, v{t2}\nv_bfe_u32 v{vH}, v{l}, 1, 2\nv_lshl_add_u32 v{t2}, v{vH}, 6, v{t2}\nv_and_or_b32 v{t2}, v{l}, 1, v{t2}\nv_add_u32 v{t2}, s31, v{t2}")
            a(f"v_lshlrev_b32 v{vO+m}, 11, v{t2}\nv_bfe_u32 v{t2}, v{l}, 4, 1\nv_lshl_add_u32 v{vO+m}, v{t2}, 5, v{vO+m}\nv_lshrrev_b32 v{t2}, 5, v{l}\nv_lshl_add_u32 v{vO+m}, v{t2}, 4, v{vO+m}")
        srd(a, 44, 10, H_SIZE, H_OFF)
        a(f"v_lshrrev_b32 v{t2}, 4, v{l}\nv_lshlrev_b32 v{vA5}, 10, v{t2}\nv_and_b32 v{t2}, 1, v{t2}\nv_lshl_add_u32 v{vA5}, v{t2}, 6, v{vA5}\nv_bfe_u32 v{t2}, v{l}, 2, 2\nv_lshl_add_u32 v{vA5}, v{t2}, 7, v{vA5}")
        a(f"v_lshrrev_b32 v{t2}, 1, v{t2}\nv_lshl_add_u32 v{vA5}, v{t2}, 5, v{vA5}\nv_and_b32 v{t2}, 3, v{l}\nv_lshl_add_u32 v{vA5}, v{t2}, 3, v{vA5}")
        for n in range(1, 4): a(f"v_xor_b32 v{vA5+n}, {32*n}, v{vA5}")
        for r in range(32): a(f"v_mov_b32 v{ACC+r}, 0")
        a("s_mov_b32 s36, 0")
    signal_wait(a, name + "_b", "s_add_u32 s63, s49, 8\n", "s_lshr_b32 s63, s25, 1\ns_add_u32 s63, s63, 8\n", t0, setup5)
    stamp(a, 12)
    def xload5(ks):
        pre = (stage_of(37, 36) + "s_lshl_b32 s37, s37, 12\ns_add_u32 s37, s37, s29\ns_add_u32 s38, s37, 114688\ns_add_u32 s36, s36, 1\n") if ks % 4 == 0 else ""
        return pre + "\n".join(f"buffer_load_dwordx4 {vr(XS5(ks,m),4)}, v{vX}, s[16:19], s{37+m} offen offset:{1024*(ks%4)} sc1" for m in range(2))
    hl = [f"buffer_load_dwordx4 {vr(HR+8*m+4*p,4)}, v{vO+m}, s[44:47], s27 offen offset:{64*p} sc1" for m in range(2) for p in range(2)]
    for k in range(7): a(xload5(k)); a(dma5(0) if k == 6 else hl[k-2] if k >= 2 else dummy)
    def wread5(idx):
        ks, n = (idx // 4) % 8, idx % 4
        return [f"ds_read_b64_tr_b16 {vr(WR5(idx)+2*h,2)}, v{vA5+n} offset:{4096*ks+512*h}" for h in range(2)]
    LA = 6
    for i in range(LA): a(wread5(i))
    a(f"s_mov_b32 s39, 14\n{name}_loop5:")
    for ks in range(8):
        for n in range(4):
            idx = ks*4 + n
            a(f"s_waitcnt vmcnt(19) lgkmcnt({2*LA-2})" if n == 0 else f"s_waitcnt lgkmcnt({2*LA-2})")
            mm = [f"{MF} {vr(acc5(n,m),4)}, {vr(WR5(idx),4)}, {vr(XS5(ks,m),4)}, {vr(acc5(n,m),4)}" for m in range(2)]
            if n & 1: mm.reverse()
            rd = wread5(idx+LA)
            a(mm[0])
            if (idx + LA) % 16 == 0:
                a("s_waitcnt vmcnt(12)\ns_barrier")
                if idx + LA == 32:
                    for q in range(4): a(f"v_xor_b32 v{vA5+q}, 32768, v{vA5+q}")
            a(rd[0]); a(mm[1]); a(rd[1])
            if n == 0: a(xload5(ks+7))
            if n == 1: a(dma5((ks+1) % 4))
            if idx == 31: a("s_sub_u32 s39, s39, 1\ns_cmp_lg_u32 s39, 0")
    a(f"s_cbranch_scc1 {name}_loop5")
    stamp(a, 13)
    srd(a, 12, 58, 2048 * 2048)
    for k in range(16): a(f"v_lshlrev_b32 v{HF+2*k}, 16, v{HR+k}\nv_and_b32 v{HF+2*k+1}, 0xffff0000, v{HR+k}")
    for m in range(2):
        for p in range(2):
            b = acc5(2*p, m); h = HF + 16*m + 8*p
            for r in range(4): a(f"v_permlane16_swap_b32 v{b+r}, v{b+4+r}")
            for k in range(4): a(f"v_pk_add_f32 {vr(b+2*k,2)}, {vr(b+2*k,2)}, {vr(h+2*k,2)}")
            for k in range(4): a(cvt(h+k, b+2*k, b+2*k+1))
            a(f"buffer_store_dwordx4 {vr(h,4)}, v{vO+m}, s[12:15], s27 offen offset:{64*p}")
    stamp(a, 14); stamp_flush(a, 2, 15, HS)
    a(f"s_waitcnt vmcnt(0)\n{name}_end:\ns_endpgm")
    return a.finish(), 256 + 80, 256, 163840
```

```python
import sys
from asmgen import *
import gen_fft, gen_gemm
PFX = "sequential_preLN__spectral_gfnet__glu_gated_bilinear__prompt"
OPT = {"code": True, "wpf": True}
PLAN = {"k1main": "G0", "k1prep0": "U0", "k2a": "G1", "k2b": "U1"}
_t = {}
def touch_setup(a, V, key, wg_expr):
    t = V(); d = V(); _t[key] = (t, d)
    a(f"{wg_expr}s_lshl_b32 s58, s58, 2\ns_add_u32 s58, s58, s3\ns_lshl_b32 s58, s58, 4")
    a(f"v_and_b32 v{t}, 15, v0\nv_add_lshl_u32 v{t}, v{t}, s58, 7\ns_mov_b32 s54, {1024*7168}\ns_mov_b32 s55, 0x20000")
def touch(a, key, what):
    t, d = _t[key]; p = 48 if what[0] == "G" else 50
    a(f"s_mov_b32 s52, s{p}\ns_mov_b32 s53, s{p+1}\ns_mov_b32 s58, {int(what[1]) << 21}\nbuffer_load_dword v{d}, v{t}, s[52:55], s58 offen")
    return 1
def std_hooks(a, V, where):
    if where == "k1start" and OPT["code"]:
        t = V(); d = V()
        a("s_getpc_b64 s[56:57]\ns_and_b32 s56, s56, 0xffffff00")
        a(f"s_bfe_u32 s60, s2, 0x50003\ns_lshl_b32 s60, s60, 3\nv_add_lshl_u32 v{t}, v0, s60, 7\nv_cmp_gt_u32 vcc, code_end-ln_rowdft_kernel, v{t}\nv_cmp_gt_u32 s[58:59], 8, v0\ns_and_b64 vcc, vcc, s[58:59]")
        a(f"s_and_saveexec_b64 s[58:59], vcc\ns_cbranch_execz code_pf_done\nglobal_load_dword v{d}, v{t}, s[56:57]\ncode_pf_done:\ns_mov_b64 exec, s[58:59]")
        return 1
    if OPT["wpf"]:
        key = where.rstrip("abc0123") if where[:2] != "k1" else where.rstrip("0123")
        key = {"k": where[:2]}.get(key, key)
        if where in ("k1main", "k2a", "k3a"): touch_setup(a, V, key, "s_mov_b32 s58, s2\n")
        if where == "k1prep0": touch_setup(a, V, key, "s_sub_u32 s58, s2, 256\n")
        n = 0
        for w in PLAN.get(where, "").split(): n += touch(a, key, w)
        return n
    return 0
def build(path, hooks=std_hooks, only=None):
    ks = []
    t, nv, lds = gen_fft.gen_k1("ln_rowdft_kernel", hooks); ks.append(("ln_rowdft_kernel", t, nv, (nv+3)//4*4, lds, 512))
    t, nv, lds = gen_fft.gen_k2("colfilter_kernel", hooks); ks.append(("colfilter_kernel", t, nv, (nv+3)//4*4, lds, 257))
    t, nv, ao, lds = gen_gemm.gen_fused(PFX + "_kernel", hooks); ks.append((PFX + "_kernel", t, nv, ao, lds, 256))
    ref = open("cdna_kernels/" + PFX + ".s.ref").read().split("\n")
    hdr = [x for x in ref[:11]]
    out = "\n".join(hdr) + "\n"
    for n, t, nv, ao, lds, grid in ks: out += f"; @launch kernel={n} grid=({grid},1,1) block=(256,1,1) lds={lds}\n"
    out += '.amdgcn_target "amdgcn-amd-amdhsa--gfx950"\n.text\n'
    for n, t, nv, ao, lds, grid in ks: out += kernel_text(n, t)
    out += 'code_end:\n.section .rodata,"a"\n'
    for n, t, nv, ao, lds, grid in ks: out += kernel_desc(n, nv, ao, 100 if STAMP['on'] else 64)
    if gen_gemm.VAR.get("sc1"):
        import re as _re
        out = _re.sub(r"(buffer_store_dwordx[24] [^\n]*)", lambda m: m.group(1) + " sc1", out)
    open(path, "w").write(out)
    for n, t, nv, ao, lds, grid in ks: print(n, "vgpr", nv, "lds", lds, "lines", len(t.splitlines()), "nops", t.count("s_nop"))
if __name__ == "__main__":
    for o in list(sys.argv):
        if o.startswith("--no"): OPT[o[4:]] = False; sys.argv.remove(o)
    for o in list(sys.argv):
        if o.startswith("--var="):
            k, _, v = o[6:].partition(":"); gen_gemm.VAR[k] = (int(v) if v.isdigit() else v) if v else 1; sys.argv.remove(o)
    for o in list(sys.argv):
        if o.startswith("--plan="): PLAN.clear(); PLAN.update(dict(x.split(":") for x in o[7:].replace("+", " ").split(","))); sys.argv.remove(o)
    if "--dbg" in sys.argv:
        STAMP["dbg"] = {0: [(0, 0), (1, 3), (2, 6)], 1: [(3, 0), (4, 3), (5, 8)], 2: [(6, 0), (7, 3), (8, 7), (9, 8), (10, 9), (11, 10), (12, 12), (13, 13), (14, 15)]}; sys.argv.remove("--dbg")
    if "--clk" in sys.argv: STAMP["clk"] = True; sys.argv.remove("--clk")
    if "--stamp" in sys.argv: STAMP["on"] = True; sys.argv.remove("--stamp")
    build(sys.argv[1] if len(sys.argv) > 1 else "cdna_kernels/" + PFX + ".s")
```

```python
import re

TRANS = ("v_exp_", "v_log_", "v_rcp_", "v_rsq_", "v_sqrt_", "v_sin_", "v_cos_")

def regs_of(tok):
    tok = tok.strip().lstrip("-")
    if tok.startswith("abs(") or tok.startswith("|"):
        tok = tok.strip("|").replace("abs(", "").rstrip(")")
    m = re.fullmatch(r"([vas])(\d+)", tok)
    if m: return [(m.group(1), int(m.group(2)))]
    m = re.fullmatch(r"([vas])\[(\d+):(\d+)\]", tok)
    if m: return [(m.group(1), i) for i in range(int(m.group(2)), int(m.group(3)) + 1)]
    if tok in ("vcc", "exec", "m0"): return [(tok, 0)]
    if tok in ("vcc_lo", "vcc_hi"): return [("vcc", 0)]
    if tok in ("exec_lo", "exec_hi"): return [("exec", 0)]
    return []

class Ins:
    def __init__(self, text):
        self.text = text
        t = text.split(";")[0].strip()
        self.label = None; self.op = None
        self.defs = set(); self.uses = set(); self.srcc = set(); self.srcab = set(); self.sdata = set()
        self.kind = "other"; self.ws = 1
        if not t or t.startswith("."):
            self.kind = "nop0"; self.ws = 0; return
        if t.endswith(":"):
            self.label = t[:-1]; self.kind = "label"; self.ws = 0; return
        p = t.split(None, 1); op = self.op = p[0]
        rest = p[1] if len(p) > 1 else ""
        ops = []
        for part in re.split(r",(?![^\[]*\])", rest):
            ops.append(part.strip().split()[0] if part.strip() else "")
        self.ops = ops; R = [regs_of(o) for o in ops]
        flat = lambda xs: set(r for x in xs for r in x)
        self.dpp = bool(re.search(r"row_|quad_perm|wave_", rest))
        if op == "s_nop": self.kind = "snop"; self.ws = int(ops[0], 0) + 1
        elif op.startswith("v_mfma"):
            self.kind = "mfma"; self.passes = 8 if "32x32" in op else 4
            self.defs = set(R[0]); self.srcab = flat(R[1:3]); self.srcc = set(R[3]); self.uses = self.srcab | self.srcc
            self.dlist = R[0]; self.clist = R[3]
        elif op.startswith("v_"):
            self.kind = "valu"; self.trans = op.startswith(TRANS)
            if op.startswith("v_permlane") and "swap" in op: self.defs = flat(R[:2]); self.uses = flat(R[:2])
            elif re.match(r"v_(add|sub|subrev)_co|v_(addc|subb)_co", op): self.defs = flat(R[:2]); self.uses = flat(R[2:])
            else:
                self.defs = set(R[0]); self.uses = flat(R[1:])
                if re.match(r"v_(fmac|mac|dot2c|pk_fmac|writelane)", op) or self.dpp: self.uses |= set(R[0])
                if op.startswith("v_cndmask") and len(ops) == 3: self.uses.add(("vcc", 0))
        elif op.startswith("buffer_") or op.startswith("global_"):
            self.kind = "vmem"; lds = bool(re.search(r"\blds\b", rest)) or "load_lds" in op
            self.lds = lds
            if lds: self.uses = flat(R) | {("m0", 0)}
            elif "load" in op: self.defs = set(R[0]); self.uses = flat(R[1:])
            elif op.startswith("buffer_"):
                self.uses = flat(R); self.sdata = set(R[0]) if re.search(r"x3|x4", op) else set()
            else:
                self.uses = flat(R); self.sdata = set(R[1]) if re.search(r"x3|x4", op) else set()
            if op in ("buffer_wbl2", "buffer_inv"): self.uses = set(); self.defs = set()
        elif op.startswith("ds_"):
            self.kind = "ds"
            if "read" in op or "permute" in op or "swizzle" in op: self.defs = set(R[0]); self.uses = flat(R[1:])
            else: self.uses = flat(R)
        elif op.startswith("s_"):
            self.kind = "salu"
            if op.startswith(("s_cmp", "s_waitcnt", "s_barrier", "s_branch", "s_cbranch", "s_endpgm", "s_setprio", "s_sleep", "s_bitcmp")):
                self.uses = flat(R)
            else:
                self.defs = set(R[0]) if R else set(); self.uses = flat(R[1:])
                if "saveexec" in op: self.defs.add(("exec", 0))

def need(p, c):
    n = 0
    vec = lambda s: {r for r in s if r[0] in "va" and len(r[0]) == 1}
    sca = lambda s: {r for r in s if r[0] in ("s", "vcc")}
    if p.kind == "valu":
        d = vec(p.defs); sd = sca(p.defs)
        if c.kind == "mfma" and d & c.uses: n = max(n, 2)
        if c.kind == "valu":
            if p.trans and not c.trans and d & c.uses: n = max(n, 1)
            if (c.dpp or c.op.startswith("v_permlane")) and d & c.uses: n = max(n, 2)
            if c.op.startswith(("v_readlane", "v_readfirstlane")) and d & c.uses: n = max(n, 1)
            if sd & c.uses: n = max(n, 4 if c.op.startswith(("v_readlane", "v_writelane")) else 2)
        if c.kind == "vmem" and sd & c.uses: n = max(n, 5)
        if ("exec", 0) in p.defs: raise Exception("VALU exec write not modelled")
    if p.kind == "mfma":
        big = p.passes == 8
        if c.kind == "mfma":
            if p.defs & c.srcab: n = max(n, 12 if big else 8)
            if p.defs & c.srcc and not (p.dlist == c.clist and p.passes == c.passes): n = max(n, 10 if big else 6)
            if p.defs & c.defs and not (p.defs & c.srcc): n = max(n, 10 if big else 6)
        elif c.kind in ("valu", "vmem", "ds"):
            if p.defs & (c.uses | c.defs): n = max(n, 12 if big else 8)
            if c.kind == "valu" and p.srcc & c.defs: n = max(n, 7 if big else 3)
    if p.kind == "salu" and ("m0", 0) in p.defs and c.kind == "vmem" and getattr(c, "lds", False): n = max(n, 1)
    if p.kind == "vmem" and p.sdata and p.sdata & c.defs: n = max(n, 2 if c.kind in ("valu", "mfma") else 1)
    return n

class Asm:
    def __init__(self): self.L = []
    def __call__(self, s):
        if isinstance(s, (list, tuple)):
            for x in s: self(x)
            return
        for line in s.split("\n"):
            if line.strip(): self.L.append(line.strip())
    def finish(self):
        ins = [Ins(t) for t in self.L]; out = []; self.nops = 0
        for c in ins:
            if c.kind in ("valu", "mfma", "vmem", "ds", "salu"):
                dist = 0; pad = 0
                for p in reversed(out):
                    if dist >= 14: break
                    if p.op in ("s_branch", "s_endpgm"): break
                    k = need(p, c)
                    if k > dist: pad = max(pad, k - dist)
                    dist += p.ws
                if pad:
                    out.append(Ins(f"s_nop {pad - 1}")); self.nops += 1
            out.append(c)
        lab = {x.label: i for i, x in enumerate(out) if x.label}
        for i, b in enumerate(out):
            if b.op and b.op.startswith(("s_branch", "s_cbranch")) and b.ops[0] in lab:
                head = out[lab[b.ops[0]]:lab[b.ops[0]] + 40]
                dh = 0
                for c in head:
                    if dh >= 14: break
                    dist = dh + 1
                    for p in reversed(out[max(0, i - 20):i]):
                        if dist >= 14: break
                        if c.op and p.op and need(p, c) > dist:
                            raise Exception(f"hazard across branch {b.text}: {p.text} -> {c.text}")
                        dist += p.ws
                    dh += c.ws
                    if c.op in ("s_branch", "s_endpgm"): break
        return "\n".join(("" if x.label else "    ") + x.text for x in out)

def interleave(main, fill, per=1, start=0):
    out = []; fill = list(fill); k = 0; acc = 0.0
    for i, m in enumerate(main):
        out.append(m)
        if i >= start:
            acc += per
            while acc >= 1 and k < len(fill):
                out.append(fill[k]); k += 1; acc -= 1
    return out + fill[k:]

def vr(n, c=1): return f"v{n}" if c == 1 else f"v[{n}:{n + c - 1}]"
def ar(n, c=1): return f"a{n}" if c == 1 else f"a[{n}:{n + c - 1}]"
def sr(n, c=1): return f"s{n}" if c == 1 else f"s[{n}:{n + c - 1}]"

class Alloc:
    def __init__(self, start=0, limit=256): self.n = start; self.limit = limit
    def __call__(self, c=1, align=None):
        al = align or (2 if c > 1 else 1)
        self.n = (self.n + al - 1) // al * al
        r = self.n; self.n += c
        assert self.n <= self.limit, "out of registers"
        return r

def fhex(x):
    import struct
    return "0x%08x" % struct.unpack("<I", struct.pack("<f", x))[0]

def srd(a, d, base, nbytes, off=0):
    if off:
        a(f"s_add_u32 s{d}, s{base}, {off}\ns_addc_u32 s{d+1}, s{base+1}, 0")
    else:
        a(f"s_mov_b32 s{d}, s{base}\ns_mov_b32 s{d+1}, s{base+1}")
    a(f"s_mov_b32 s{d+2}, {nbytes}\ns_mov_b32 s{d+3}, 0x20000")

def kernel_text(name, body):
    return f".globl {name}\n.p2align 8\n.type {name},@function\n{name}:\n{body}\n"

def kernel_desc(name, vgpr, accum, sgpr=102):
    return (f".p2align 6\n.amdhsa_kernel {name}\n  .amdhsa_next_free_vgpr {vgpr}\n  .amdhsa_next_free_sgpr {sgpr}\n"
            f"  .amdhsa_accum_offset {accum}\n  .amdhsa_group_segment_fixed_size 0\n  .amdhsa_kernarg_size 80\n"
            f"  .amdhsa_user_sgpr_count 2\n  .amdhsa_user_sgpr_kernarg_segment_ptr 1\n  .amdhsa_system_sgpr_workgroup_id_x 1\n"
            f"  .amdhsa_float_denorm_mode_32 3\n.end_amdhsa_kernel\n")

STAMP = {"on": False}
STAMP_OFF = 0x3000000
def stamp(a, i):
    if STAMP["on"]: a(f"{'s_memtime' if STAMP.get('clk') else 's_memrealtime'} s[{64+2*i}:{65+2*i}]")
def stamp_flush(a, kid, n, v=8):
    if not STAMP["on"]: return
    a("s_waitcnt vmcnt(0)"); stamp(a, n); a("s_waitcnt lgkmcnt(0)\ns_mov_b64 exec, 1")
    if STAMP.get("dbg"):
        lab = f"dbg_skip_{kid}_{n}"
        a(f"s_cmp_lg_u32 s2, 9\ns_cbranch_scc1 {lab}\ns_cmp_lg_u32 s3, 0\ns_cbranch_scc1 {lab}\ns_load_dwordx2 s[60:61], s[0:1], 64\ns_waitcnt lgkmcnt(0)")
        sel = STAMP["dbg"][kid]
        for slot, i in sel: a(f"v_mov_b32 v{v}, {4*slot}\nv_mov_b32 v{v+1}, s{64+2*i}\nglobal_store_dword v{v}, v{v+1}, s[60:61] offset:{512*(2-kid)}")
        a(f"{lab}:")
        return
    a(f"s_lshl_b32 s62, s2, 2\ns_add_u32 s62, s62, s3\ns_lshl_b32 s62, s62, 6\ns_add_u32 s62, s62, {STAMP_OFF + kid * 0x40000}\nv_mov_b32 v{v}, s62")
    for i in range(n + 1): a(f"v_mov_b32 v{v+1}, s{64+2*i}\nglobal_store_dword v{v}, v{v+1}, s[10:11] offset:{4*i}")
```

```python
import re

TRANS = ("v_exp_", "v_log_", "v_rcp_", "v_rsq_", "v_sqrt_", "v_sin_", "v_cos_")

def regs_of(tok):
    tok = tok.strip().lstrip("-")
    if tok.startswith("abs(") or tok.startswith("|"):
        tok = tok.strip("|").replace("abs(", "").rstrip(")")
    m = re.fullmatch(r"([vas])(\d+)", tok)
    if m: return [(m.group(1), int(m.group(2)))]
    m = re.fullmatch(r"([vas])\[(\d+):(\d+)\]", tok)
    if m: return [(m.group(1), i) for i in range(int(m.group(2)), int(m.group(3)) + 1)]
    if tok in ("vcc", "exec", "m0"): return [(tok, 0)]
    if tok in ("vcc_lo", "vcc_hi"): return [("vcc", 0)]
    if tok in ("exec_lo", "exec_hi"): return [("exec", 0)]
    return []

class Ins:
    def __init__(self, text):
        self.text = text
        t = text.split(";")[0].strip()
        self.label = None; self.op = None
        self.defs = set(); self.uses = set(); self.srcc = set(); self.srcab = set(); self.sdata = set()
        self.kind = "other"; self.ws = 1
        if not t or t.startswith("."):
            self.kind = "nop0"; self.ws = 0; return
        if t.endswith(":"):
            self.label = t[:-1]; self.kind = "label"; self.ws = 0; return
        p = t.split(None, 1); op = self.op = p[0]
        rest = p[1] if len(p) > 1 else ""
        ops = []
        for part in re.split(r",(?![^\[]*\])", rest):
            ops.append(part.strip().split()[0] if part.strip() else "")
        self.ops = ops; R = [regs_of(o) for o in ops]
        flat = lambda xs: set(r for x in xs for r in x)
        self.dpp = bool(re.search(r"row_|quad_perm|wave_", rest))
        if op == "s_nop": self.kind = "snop"; self.ws = int(ops[0], 0) + 1
        elif op.startswith("v_mfma"):
            self.kind = "mfma"; self.passes = 8 if "32x32" in op else 4
            self.defs = set(R[0]); self.srcab = flat(R[1:3]); self.srcc = set(R[3]); self.uses = self.srcab | self.srcc
            self.dlist = R[0]; self.clist = R[3]
        elif op.startswith("v_"):
            self.kind = "valu"; self.trans = op.startswith(TRANS)
            if op.startswith("v_permlane") and "swap" in op: self.defs = flat(R[:2]); self.uses = flat(R[:2])
            elif re.match(r"v_(add|sub|subrev)_co|v_(addc|subb)_co", op): self.defs = flat(R[:2]); self.uses = flat(R[2:])
            else:
                self.defs = set(R[0]); self.uses = flat(R[1:])
                if re.match(r"v_(fmac|mac|dot2c|pk_fmac|writelane)", op) or self.dpp: self.uses |= set(R[0])
                if op.startswith("v_cndmask") and len(ops) == 3: self.uses.add(("vcc", 0))
        elif op.startswith("buffer_") or op.startswith("global_"):
            self.kind = "vmem"; lds = bool(re.search(r"\blds\b", rest)) or "load_lds" in op
            self.lds = lds
            if lds: self.uses = flat(R) | {("m0", 0)}
            elif "load" in op: self.defs = set(R[0]); self.uses = flat(R[1:])
            elif op.startswith("buffer_"):
                self.uses = flat(R); self.sdata = set(R[0]) if re.search(r"x3|x4", op) else set()
            else:
                self.uses = flat(R); self.sdata = set(R[1]) if re.search(r"x3|x4", op) else set()
            if op in ("buffer_wbl2", "buffer_inv"): self.uses = set(); self.defs = set()
        elif op.startswith("ds_"):
            self.kind = "ds"
            if "read" in op or "permute" in op or "swizzle" in op: self.defs = set(R[0]); self.uses = flat(R[1:])
            else: self.uses = flat(R)
        elif op.startswith("s_"):
            self.kind = "salu"
            if op.startswith(("s_cmp", "s_waitcnt", "s_barrier", "s_branch", "s_cbranch", "s_endpgm", "s_setprio", "s_sleep", "s_bitcmp")):
                self.uses = flat(R)
            else:
                self.defs = set(R[0]) if R else set(); self.uses = flat(R[1:])
                if "saveexec" in op: self.defs.add(("exec", 0))

def need(p, c):
    n = 0
    vec = lambda s: {r for r in s if r[0] in "va" and len(r[0]) == 1}
    sca = lambda s: {r for r in s if r[0] in ("s", "vcc")}
    if p.kind == "valu":
        d = vec(p.defs); sd = sca(p.defs)
        if c.kind == "mfma" and d & c.uses: n = max(n, 2)
        if c.kind == "valu":
            if p.trans and not c.trans and d & c.uses: n = max(n, 1)
            if (c.dpp or c.op.startswith("v_permlane")) and d & c.uses: n = max(n, 2)
            if c.op.startswith(("v_readlane", "v_readfirstlane")) and d & c.uses: n = max(n, 1)
            if sd & c.uses: n = max(n, 4 if c.op.startswith(("v_readlane", "v_writelane")) else 2)
        if c.kind == "vmem" and sd & c.uses: n = max(n, 5)
        if ("exec", 0) in p.defs: raise Exception("VALU exec write not modelled")
    if p.kind == "mfma":
        big = p.passes == 8
        if c.kind == "mfma":
            if p.defs & c.srcab: n = max(n, 12 if big else 8)
            if p.defs & c.srcc and not (p.dlist == c.clist and p.passes == c.passes): n = max(n, 10 if big else 6)
            if p.defs & c.defs and not (p.defs & c.srcc): n = max(n, 10 if big else 6)
        elif c.kind in ("valu", "vmem", "ds"):
            if p.defs & (c.uses | c.defs): n = max(n, 12 if big else 8)
            if c.kind == "valu" and p.srcc & c.defs: n = max(n, 7 if big else 3)
    if p.kind == "salu" and ("m0", 0) in p.defs and c.kind == "vmem" and getattr(c, "lds", False): n = max(n, 1)
    if p.kind == "vmem" and p.sdata and p.sdata & c.defs: n = max(n, 2 if c.kind in ("valu", "mfma") else 1)
    return n

class Asm:
    def __init__(self): self.L = []
    def __call__(self, s):
        if isinstance(s, (list, tuple)):
            for x in s: self(x)
            return
        for line in s.split("\n"):
            if line.strip(): self.L.append(line.strip())
    def finish(self):
        ins = [Ins(t) for t in self.L]; out = []; self.nops = 0
        for c in ins:
            if c.kind in ("valu", "mfma", "vmem", "ds", "salu"):
                dist = 0; pad = 0
                for p in reversed(out):
                    if dist >= 14: break
                    if p.op in ("s_branch", "s_endpgm"): break
                    k = need(p, c)
                    if k > dist: pad = max(pad, k - dist)
                    dist += p.ws
                if pad:
                    out.append(Ins(f"s_nop {pad - 1}")); self.nops += 1
            out.append(c)
        lab = {x.label: i for i, x in enumerate(out) if x.label}
        for i, b in enumerate(out):
            if b.op and b.op.startswith(("s_branch", "s_cbranch")) and b.ops[0] in lab:
                head = out[lab[b.ops[0]]:lab[b.ops[0]] + 40]
                dh = 0
                for c in head:
                    if dh >= 14: break
                    dist = dh + 1
                    for p in reversed(out[max(0, i - 20):i]):
                        if dist >= 14: break
                        if c.op and p.op and need(p, c) > dist:
                            raise Exception(f"hazard across branch {b.text}: {p.text} -> {c.text}")
                        dist += p.ws
                    dh += c.ws
                    if c.op in ("s_branch", "s_endpgm"): break
        return "\n".join(("" if x.label else "    ") + x.text for x in out)

def interleave(main, fill, per=1, start=0):
    out = []; fill = list(fill); k = 0; acc = 0.0
    for i, m in enumerate(main):
        out.append(m)
        if i >= start:
            acc += per
            while acc >= 1 and k < len(fill):
                out.append(fill[k]); k += 1; acc -= 1
    return out + fill[k:]

def vr(n, c=1): return f"v{n}" if c == 1 else f"v[{n}:{n + c - 1}]"
def ar(n, c=1): return f"a{n}" if c == 1 else f"a[{n}:{n + c - 1}]"
def sr(n, c=1): return f"s{n}" if c == 1 else f"s[{n}:{n + c - 1}]"

class Alloc:
    def __init__(self, start=0, limit=256): self.n = start; self.limit = limit
    def __call__(self, c=1, align=None):
        al = align or (2 if c > 1 else 1)
        self.n = (self.n + al - 1) // al * al
        r = self.n; self.n += c
        assert self.n <= self.limit, "out of registers"
        return r

def fhex(x):
    import struct
    return "0x%08x" % struct.unpack("<I", struct.pack("<f", x))[0]

def srd(a, d, base, nbytes, off=0):
    if off:
        a(f"s_add_u32 s{d}, s{base}, {off}\ns_addc_u32 s{d+1}, s{base+1}, 0")
    else:
        a(f"s_mov_b32 s{d}, s{base}\ns_mov_b32 s{d+1}, s{base+1}")
    a(f"s_mov_b32 s{d+2}, {nbytes}\ns_mov_b32 s{d+3}, 0x20000")

def kernel_text(name, body):
    return f".globl {name}\n.p2align 8\n.type {name},@function\n{name}:\n{body}\n"

def kernel_desc(name, vgpr, accum, sgpr=102):
    return (f".p2align 6\n.amdhsa_kernel {name}\n  .amdhsa_next_free_vgpr {vgpr}\n  .amdhsa_next_free_sgpr {sgpr}\n"
            f"  .amdhsa_accum_offset {accum}\n  .amdhsa_group_segment_fixed_size 0\n  .amdhsa_kernarg_size 80\n"
            f"  .amdhsa_user_sgpr_count 2\n  .amdhsa_user_sgpr_kernarg_segment_ptr 1\n  .amdhsa_system_sgpr_workgroup_id_x 1\n"
            f"  .amdhsa_float_denorm_mode_32 3\n.end_amdhsa_kernel\n")

STAMP = {"on": False}
STAMP_OFF = 0x3000000
def stamp(a, i):
    if isinstance(i, str):
        if i not in STAMP.get("sel", []): return
        i = STAMP["sel"].index(i)
    if STAMP["on"]: a(f"{'s_memtime' if STAMP.get('clk') else 's_memrealtime'} s[{64+2*i}:{65+2*i}]")
def stamp_flush(a, kid, n, v=8):
    if not STAMP["on"]: return
    n = len(STAMP["sel"])
    a("s_waitcnt vmcnt(0)"); stamp(a, n); a("s_waitcnt lgkmcnt(0)\ns_mov_b64 exec, 1")
    if STAMP.get("dbg"):
        lab = f"dbg_skip_{kid}_{n}"
        a(f"s_cmp_lg_u32 s2, 9\ns_cbranch_scc1 {lab}\ns_cmp_lg_u32 s3, 0\ns_cbranch_scc1 {lab}\ns_load_dwordx2 s[60:61], s[0:1], 64\ns_waitcnt lgkmcnt(0)")
        sel = STAMP["dbg"][kid]
        for slot, i in sel: a(f"v_mov_b32 v{v}, {4*slot}\nv_mov_b32 v{v+1}, s{64+2*i}\nglobal_store_dword v{v}, v{v+1}, s[60:61] offset:0")
        a(f"{lab}:")
        return
    a(f"s_lshl_b32 s62, s2, 2\ns_add_u32 s62, s62, s3\ns_lshl_b32 s62, s62, 7\ns_add_u32 s62, s62, {STAMP_OFF}\nv_mov_b32 v{v}, s62")
    for i in range(n + 1): a(f"v_mov_b32 v{v+1}, s{64+2*i}\nglobal_store_dword v{v}, v{v+1}, s[10:11] offset:{4*i}")
```

```python
from asmgen import *
from gen_row import *
WBYTES = 1024 * 7168

def sync(a, name, add_expr, poll_expr, nshard, vt, work, nfirst, after_add=None, st=None, drain=None, before_poll=None):
    w = Asm(); work(w); L = w.L
    while nfirst < len(L) and any(x.startswith(("s_cbranch", "s_branch")) and x.split()[1] + ":" in L[nfirst:] for x in L[:nfirst]): nfirst += 1
    while nfirst < len(L) and not (L[nfirst-1].startswith("v_") and L[nfirst].startswith("v_")): nfirst += 1
    a(L[:nfirst])
    if drain: drain(a)
    else: a("s_waitcnt vmcnt(0)")
    if st is not None: stamp(a, st)
    a(f"s_barrier\ns_cmp_lg_u32 s3, 0\ns_cbranch_scc1 {name}_skip1")
    a(f"{add_expr}s_lshl_b32 s63, s63, 8\ns_add_u32 s63, s63, {CNT_OFF}\nv_mov_b32 v{vt}, s63\nv_mov_b32 v{vt+1}, 1\ns_mov_b64 exec, 1")
    a(f"global_atomic_add v{vt}, v{vt+1}, s[10:11] sc1\ns_mov_b64 exec, -1\n{name}_skip1:")
    if after_add: after_add()
    a(L[nfirst:])
    if st: stamp(a, st.replace("drain", "work"))
    if before_poll: before_poll(a)
    a(f"s_cmp_lg_u32 s3, 0\ns_cbranch_scc1 {name}_skip2")
    a(f"{poll_expr}s_lshl_b32 s63, s63, 8\ns_add_u32 s63, s63, {CNT_OFF}\nv_mbcnt_lo_u32_b32 v{vt}, -1, 0\nv_lshl_add_u32 v{vt}, v{vt}, 8, s63\ns_mov_b32 s63, 0x40000\ns_mov_b64 exec, {(1 << nshard) - 1}\n{name}_poll:")
    a(f"global_load_dword v{vt+1}, v{vt}, s[10:11] sc1\ns_waitcnt vmcnt(0)\nv_cmp_ne_u32 vcc, {16 if nshard > 1 else 32}, v{vt+1}\ns_sub_u32 s63, s63, 1\ns_cbranch_scc1 {name}_done")
    a(f"s_cbranch_vccz {name}_done\ns_sleep 1\ns_branch {name}_poll\n{name}_done:\ns_mov_b64 exec, -1\n{name}_skip2:\ns_barrier")

def gen_fused(name, hooks=None):
    a = Asm()
    STG = 28672; TORD = [6, 0, 1, 2, 3, 4, 5]
    acc = lambda t, mat, m: ((t*2+mat)*4+m)*4
    P = Alloc(232)
    l, vA, vB, vX = P(), P(), P(), P()
    vD = P(7); t0, t1, t2 = P(), P(), P(); vP, vPd = P(), P(); vD5 = P(2); vS = P(2); vH = P()
    WR = lambda i: 4*(i % 4)
    XS = lambda ks, m: 16 + 16*(ks % 4) + 4*m
    a("s_load_dwordx2 s[4:5], s[0:1], 0\ns_load_dwordx2 s[10:11], s[0:1], 72\ns_load_dwordx2 s[52:53], s[0:1], 8\ns_load_dwordx2 s[54:55], s[0:1], 16")
    a("s_load_dwordx2 s[6:7], s[0:1], 32\ns_load_dwordx2 s[8:9], s[0:1], 40\ns_load_dwordx4 s[56:59], s[0:1], 48\ns_load_dwordx2 s[60:61], s[0:1], 64")
    if STAMP["on"]:
        for r in range(66, 102): a(f"s_mov_b32 s{r}, 0")
    stamp(a, "start")
    a(f"s_cmp_ge_u32 s2, 256\ns_cbranch_scc1 {name}_end")
    a(f"s_getpc_b64 s[12:13]\ns_and_b32 s12, s12, 0xffffff00\ns_lshr_b32 s14, s2, 3\ns_lshl_b32 s14, s14, 4\nv_add_lshl_u32 v4, v0, s14, 7\nv_cmp_gt_u32 vcc, code_end-{name}, v4\nv_cmp_gt_u32 s[14:15], 16, v0")
    a(f"s_and_b64 vcc, vcc, s[14:15]\ns_and_saveexec_b64 s[14:15], vcc\ns_cbranch_execz {name}_cpf\nglobal_load_dword v5, v4, s[12:13]\n{name}_cpf:\ns_mov_b64 exec, s[14:15]")
    a(f"v_lshrrev_b32 v{G_}, 6, v0\nv_and_b32 v{L_}, 63, v0\nv_readfirstlane_b32 s3, v{G_}\nv_and_b32 v{J_}, 15, v{L_}\nv_lshrrev_b32 v{G_}, 4, v{L_}")
    def touches(spec, vt):
        if not spec or spec == "-": return 0
        a(f"s_lshl_b32 s63, s2, 2\ns_add_u32 s63, s63, s3\ns_lshl_b32 s63, s63, 4\nv_add_lshl_u32 v{vt}, v{J_}, s63, 7\ns_mov_b32 s38, {WBYTES}\ns_mov_b32 s39, 0x20000")
        for w in spec.split("_"):
            p = {"G": 6, "U": 8, "D": 56}[w[0]]
            a(f"s_mov_b32 s36, s{p}\ns_mov_b32 s37, s{p+1}\ns_mov_b32 s63, {int(w[1]) << 21}\nbuffer_load_dword a79, v{vt}, s[36:39], s63 offen")
        return len(spec.split("_"))
    p2 = P2(name + "_p2"); p3 = P3(name + "_p3"); p1 = P1(name + "_p1", p2)
    p1.main(a)
    stamp(a, "p1end")
    sync(a, name + "_s1", "s_and_b32 s63, s2, 15\n", "s_mov_b32 s63, 0\n", 16, p2.D, p2.pre, VAR.get("n1", 130), lambda: touches(VAR.get("t1", "-"), p2.D + 2), "drain1", p1.drain, p1.filt)
    stamp(a, "bar1")
    p2.main(a, lambda w: touches(VAR.get("t" + w[1:], "G0_U0"), p2.t0))
    stamp(a, "p2end")
    def st4(dst, pos):
        return (f"s_and_b32 s63, s{pos}, 3\ns_cmp_eq_u32 s63, s4\ns_cselect_b32 s63, 4, 0\ns_add_u32 s{dst}, s{pos}, s63\ns_and_b32 s{dst}, s{dst}, 15\n")
    def dma4(buf_expr):
        o = []
        for i in range(7):
            pre = ""
            if i == 0: pre = f"{st4(51, 5)}s_mul_i32 s51, s51, 458752\ns_add_u32 s5, s5, 1\n{buf_expr}s_mov_b32 m0, s52\n"
            if i == 4: pre = "s_add_u32 s52, s52, 4096\ns_mov_b32 m0, s52\n"
            post = ""
            o.append((pre, f"buffer_load_dwordx4 v{vD+i}, s[44:47], s51 offen offset:{1024*(i&3)} {VAR.get('wfl', '').replace('_', ' ')} lds{post}"))
        return o
    def hook3(where):
        n = 0
        if where == VAR.get("d0at", "p3b"):
            for p, q in dma4("s_mov_b32 s52, s50\n"): a(p + q)
            n += 7
        if where == VAR.get("d1at", "p3c"):
            for p, q in dma4(f"s_add_u32 s52, s50, {STG}\n"): a(p + q)
            n += 7
        return n
    def addr4(a):
        a(f"v_and_b32 v{l}, 63, v0")
        a("s_and_b32 s48, s2, 7\ns_lshl_b32 s48, s48, 2\ns_bfe_u32 s49, s2, 0x20003\ns_add_u32 s48, s48, s49\ns_lshr_b32 s49, s2, 5")
        a("s_and_b32 s30, s3, 1\ns_mul_i32 s30, s30, 229376\ns_mul_i32 s31, s48, 224\ns_add_u32 s30, s30, s31\ns_movk_i32 s31, 4682\ns_movk_i32 s32, 7168")
        for i in range(7):
            a(f"v_add_u32 v{t0}, {64*i}, v{l}\nv_mul_u32_u24 v{t1}, s31, v{t0}\nv_lshrrev_b32 v{t1}, 16, v{t1}")
            a(f"v_mul_u32_u24 v{t2}, 14, v{t1}\nv_sub_u32 v{t0}, v{t0}, v{t2}")
            a(f"v_bfe_u32 v{t2}, v{t1}, 2, 1\nv_bfe_u32 v{vD+i}, v{t1}, 3, 1\nv_xor_b32 v{t2}, v{t2}, v{vD+i}\nv_mul_u32_u24 v{t2}, 12, v{t2}\nv_xor_b32 v{t1}, v{t1}, v{t2}")
            a(f"v_mul_u32_u24 v{t1}, s32, v{t1}\nv_lshl_add_u32 v{t1}, v{t0}, 4, v{t1}\nv_add_u32 v{vD+i}, s30, v{t1}")
            if i & 3: a(f"v_subrev_u32 v{vD+i}, {1024*(i&3)}, v{vD+i}")
        a("s_add_u32 s4, s48, s49\ns_and_b32 s4, s4, 3\ns_mov_b32 s5, 0" if VAR.get("skew4", 0) else "s_mov_b32 s4, 7\ns_mov_b32 s5, 0")
        a(f"s_mul_i32 s50, s3, 7168\ns_cmp_lt_u32 s3, 2\ns_cselect_b32 s44, s6, s8\ns_cselect_b32 s45, s7, s9\ns_mov_b32 s46, {WBYTES}\ns_mov_b32 s47, 0x20000")
    def pre3(w): p3.xloads(w); p3.pre(w); addr4(w)
    sync(a, name + "_s2", "s_and_b32 s63, s2, 15\ns_add_u32 s63, s63, 16\n", "s_mov_b32 s63, 16\n", 16, p3.D, pre3, VAR.get("n2", 130), lambda: touches(VAR.get("t2", "G1_U1"), p3.D + 2), "drain2")
    stamp(a, "bar2")
    p3.main(a, hook3)
    stamp(a, "p3end")
    def setup4(a):
        a(f"v_lshlrev_b32 v{vX}, 4, v{l}")
        a("s_lshl_b32 s28, s49, 4\ns_lshl_b32 s29, s3, 2\ns_add_u32 s28, s28, s29")
        a("s_lshl_b32 s43, s28, 15\ns_mov_b32 s31, 0")
        srd(a, 16, 10, HN_SIZE, HN_OFF)
        a(f"s_lshl_b32 s24, s2, 2\ns_add_u32 s24, s24, s3\nv_lshlrev_b32 v{vP}, 10, v{l}\nv_add_lshl_u32 v{vP}, v{vP}, s24, 7\ns_mov_b32 s22, {WBYTES}\ns_mov_b32 s23, 0x20000")
        a(f"v_lshrrev_b32 v{t0}, 5, v{l}\nv_lshlrev_b32 v{t0}, 4, v{t0}\nv_bfe_u32 v{t1}, v{l}, 4, 1\nv_lshl_add_u32 v{t0}, v{t1}, 2, v{t0}\nv_bfe_u32 v{t1}, v{l}, 2, 2\nv_add_u32 v{t0}, v{t0}, v{t1}")
        a(f"v_mul_u32_u24 v{t0}, 224, v{t0}\nv_and_b32 v{t1}, 3, v{l}\nv_lshl_add_u32 v{t0}, v{t1}, 3, v{t0}")
        a(f"s_and_b32 s36, s48, 1\ns_lshl_b32 s37, s36, 5\nv_add_u32 v{vA}, s37, v{t0}\ns_cmp_eq_u32 s36, 0\ns_cselect_b32 s37, 192, 0\nv_add_u32 v{vB}, s37, v{t0}")
        a(f"v_bfe_u32 v{t0}, v{l}, 4, 1\nv_lshrrev_b32 v{t1}, 5, v{l}\nv_and_b32 v{t2}, 15, v{l}\nv_lshlrev_b32 v{t2}, 4, v{t2}\nv_lshl_add_u32 v{t2}, v{t1}, 8, v{t2}")
        a(f"v_lshl_add_u32 v{vS}, v{t0}, 9, v{t2}\nv_mul_u32_u24 v{t0}, 114688, v{t0}\nv_add_u32 v{vS+1}, v{t0}, v{t2}")
        a("s_lshr_b32 s37, s48, 1\ns_mul_i32 s37, s37, 7\ns_add_u32 s41, s37, 3\ns_lshl_b32 s42, s36, 2\ns_add_u32 s37, s37, s42\ns_lshl_b32 s37, s37, 10\ns_lshl_b32 s41, s41, 10\ns_lshl_b32 s42, s36, 9\ns_add_u32 s41, s41, s42")
        a("s_mul_i32 s28, s28, 114688\ns_add_u32 s37, s37, s28\ns_add_u32 s41, s41, s28\ns_add_u32 s42, s41, 229376")
        a("s_add_u32 s28, s37, 114688\ns_add_u32 s29, s37, 229376\ns_add_u32 s30, s37, 344064")
        a("s_bfe_u32 s25, s2, 0x20001\ns_lshl_b32 s25, s25, 2\ns_lshr_b32 s60, s2, 6\ns_add_u32 s25, s25, s60")
        a("s_and_b32 s27, s2, 1\ns_lshl_b32 s27, s27, 3\ns_bfe_u32 s61, s2, 0x30003\ns_add_u32 s27, s27, s61\ns_lshl_b32 s27, s27, 7")
        a("s_add_u32 s60, s60, s61\ns_and_b32 s60, s60, 3\ns_lshl_b32 s61, s3, 12\ns_mov_b32 s53, 0")
        a(f"v_lshrrev_b32 v{t0}, 3, v{l}\nv_and_b32 v{t1}, 2, v{t0}\nv_and_b32 v{t2}, 7, v{l}\nv_xor_b32 v{t2}, v{t2}, v{t1}\nv_lshlrev_b32 v{t2}, 4, v{t2}\nv_lshl_add_u32 v{t2}, v{t0}, 11, v{t2}")
        a(f"s_lshl_b32 s26, s3, 16\ns_add_u32 s26, s26, s27\nv_add_u32 v{vD5}, s26, v{t2}\nv_xor_b32 v{vD5+1}, 64, v{vD5}")
        srd(a, 12, 56, 3584 * 2048)
        for r in range(224): a(f"v_mov_b32 v{r}, 0")
    sync(a, name + "_a", "s_and_b32 s63, s2, 7\ns_add_u32 s63, s63, 32\n", "s_add_u32 s63, s49, 32\n", 1, 224, setup4, VAR.get("n3", 130), None, "drain3")
    stamp(a, "bar3")
    fl = "sc1"
    def xload(ks):
        o = [("", f"buffer_load_dwordx4 {ar(XS(ks,m),4)}, v{vX}, s[16:19], s{32+m} offen offset:{1024*(ks&1)} {fl}") for m in range(4)]
        if not ks & 1: o[0] = (st4(32, 31) + "s_lshl_b32 s32, s32, 11\ns_add_u32 s32, s32, s43\ns_add_u32 s33, s32, 0x8000\ns_add_u32 s34, s32, 0x10000\ns_add_u32 s35, s32, 0x18000\ns_add_u32 s31, s31, 1\n", o[0][1])
        return o
    flat = lambda o: [p + q for p, q in o]
    dummy = f"buffer_load_dword v{vPd}, v{vX}, s[20:23], s22 offen"
    a("s_mov_b32 s20, s6\ns_mov_b32 s21, s7")
    a(flat(xload(0))); a(flat(xload(1))); a([dummy] * 7); a(flat(xload(2)))
    def frag(ks, t, mat, ring):
        off = (ks >> 1) * STG + mat * 14336 + (ks & 1) * 7168 + (32 * t if t < 6 else 0)
        return [f"ds_read_b64_tr_b16 {ar(WR(ring)+2*h,2)}, v{vB if t == 6 else vA} offset:{off+1792*h}" for h in range(2)]
    def wread(idx): return frag((idx // 14) % 4, TORD[(idx % 14) >> 1], idx & 1, idx)
    def mms(ks, t, mat, ring):
        mm = [f"{MF} {vr(acc(t,mat,m),4)}, {ar(WR(ring),4)}, {ar(XS(ks,m),4)}, {vr(acc(t,mat,m),4)}" for m in range(4)]
        return mm[::-1] if ring & 1 else mm
    for i in range(3): a(wread(i))
    sched = dict((int(x[0]), x[1]) for x in VAR.get("pf", "0G_1U_3D").split("_") if x)
    touch_next = f"s_mov_b32 s24, {WBYTES}\n" + "".join(
        f"s_cmp_eq_u32 s39, {it}\ns_cselect_b32 s20, s{p}, s20\ns_cselect_b32 s21, s{p+1}, s21\ns_cselect_b32 s24, {0 if w == 'D' else 1 << 22}, s24\n"
        for it, w in sched.items() for p in [{"G": 6, "U": 8, "D": 56}[w]])
    touch = f"buffer_load_dword v{vPd}, v{vP}, s[20:23], s24 offen"
    a(f"s_mov_b32 s39, 0\ns_mov_b32 s40, {2*STG}\n{name}_loop4:")
    for ks in range(4):
        extra = xload(ks+3)
        if ks == 0: extra += dma4("s_add_u32 s52, s50, s40\n")
        if ks == 2: extra += dma4(f"s_add_u32 s52, s50, s40\ns_add_u32 s52, s52, {STG}\ns_xor_b32 s40, s40, {2*STG}\n")
        if ks == 1: extra.append((touch_next, touch))
        for n in range(14):
            idx = ks*14 + n
            a(f"s_waitcnt vmcnt({[15, 22, 16, 23][ks]}) lgkmcnt(4)" if n == 0 else "s_waitcnt lgkmcnt(4)")
            mm = mms(ks, TORD[n >> 1], n & 1, idx); rd = wread(idx+3)
            a(mm[0])
            if n == 11 and ks & 1:
                a("s_waitcnt vmcnt(19)\ns_barrier")
                if ks == 3: a(f"v_xor_b32 v{vA}, {2*STG}, v{vA}\nv_xor_b32 v{vB}, {2*STG}, v{vB}")
            a(rd[0]); a(mm[1]); a(rd[1])
            e = extra.pop(0) if extra else None
            if e: a(e[0])
            a(mm[2])
            if e: a(e[1])
            if idx == 55: a("s_add_u32 s39, s39, 1\ns_cmp_lg_u32 s39, 7")
            a(mm[3])
        assert not extra
    a(f"s_cbranch_scc1 {name}_loop4")
    stamp(a, "p4loop")
    def stage_of(dst, pos):
        return (f"s_and_b32 s63, s{pos}, 3\ns_cmp_eq_u32 s63, s60\ns_cselect_b32 s63, 4, 0\ns_add_u32 s{dst}, s{pos}, s63\n"
                f"s_cmp_ge_u32 s{dst}, 28\ns_cselect_b32 s63, 28, 0\ns_sub_u32 s{dst}, s{dst}, s63\ns_cmp_ge_u32 s{pos}, 28\ns_cselect_b32 s{dst}, 28, s{dst}\n")
    def dma5(i):
        pre = (stage_of(54, 53) + "s_lshl_b32 s54, s54, 18\ns_and_b32 s55, s53, 3\ns_lshl_b32 s55, s55, 14\ns_add_u32 s55, s55, s61\ns_add_u32 s53, s53, 1\n") if i == 0 else "s_add_u32 s54, s54, 16384\ns_add_u32 s55, s55, 1024\n"
        return pre + f"s_mov_b32 m0, s55\nbuffer_load_dwordx4 v{vD5+(i&1)}, s[12:15], s54 offen lds"
    seq = [(6, k) for k in range(3)] + [(0, k) for k in range(3)] + [(6, 3), (0, 3)] + [(t, k) for t in range(1, 6) for k in range(4)]
    seq = [(t, k, mat) for t, k in seq for mat in range(2)]
    vm = ["X0"] * 4 + ["T"] + ["X1"] * 4 + ["D"] * 7 + ["X2"] * 4
    def vwait(tag): return len(vm) - 1 - max(i for i, x in enumerate(vm) if x == tag)
    a(flat(xload(3))); vm += ["X3"] * 4
    srd(a, 16, 10, HH_SIZE, HH_OFF)
    a(frag(seq[2][1], seq[2][0], seq[2][2], 2))
    def product(t):
        o = []
        for m in range(4):
            g_, u_ = acc(t,0,m), acc(t,1,m)
            o += [f"v_mul_f32 v{g_+r}, v{g_+r}, v{u_+r}" for r in range(4)]
            d = (acc(t & ~1, 1, m) + 2*(t & 1)) if t < 6 else (acc(6, 1, m & ~1) + 2*(m & 1))
            if t < 6 and not t & 1 or t == 6 and not m & 1: o += [cvt(g_, g_, g_+1), cvt(g_+1, g_+2, g_+3)]
            else:
                p = acc(t-1, 0, m) if t < 6 else acc(6, 0, m-1)
                o += [cvt(p+2, g_, g_+1), cvt(p+3, g_+2, g_+3), f"v_permlane16_swap_b32 v{p}, v{p+2}", f"v_permlane16_swap_b32 v{p+1}, v{p+3}"]
                if t < 6: o.append(f"buffer_store_dwordx4 {vr(p,4)}, v{vS}, s[16:19], s{[37,28,29,30][m]} offen offset:{1024*(t>>1)} sc1")
                else: o.append(f"buffer_store_dwordx4 {vr(p,4)}, v{vS+1}, s[16:19], s{41+(m>>1)} offen sc1")
        return o
    fill = []; seen = set(); outstanding = 4 + 2 + 2
    for i, (t, k, mat) in enumerate(seq):
        lg = 4 if i + 2 < len(seq) else 2 * (len(seq) - 1 - i)
        w = f"s_waitcnt lgkmcnt({lg})"
        if k not in seen: seen.add(k); w = f"s_waitcnt vmcnt({vwait('X'+str(k))}) lgkmcnt({lg})"
        a(w)
        mm = mms(k, t, mat, i)
        rd = frag(seq[i+3][1], seq[i+3][0], seq[i+3][2], i+3) if i + 3 < len(seq) else ["", ""]
        a(mm[0])
        if i == 1:
            a(f"s_waitcnt vmcnt({vwait('D')})\ns_barrier")
            fill += [dma5(q % 4) for q in range(8)]
        def put(n):
            for _ in range(n):
                if fill:
                    x = fill.pop(0); a(x)
                    if "buffer_" in x: vm.append("o")
        a(rd[0]); a(mm[1]); a(rd[1]); put(1); a(mm[2]); put(2); a(mm[3])
        if i + 1 < len(seq): put(1)
        if k == 3 and mat == 1:
            if i + 1 < len(seq): fill += ["s_nop 0"] * 2
            fill += product(t)
    a(fill)
    stamp(a, "p4end")
    V = Alloc(0, 232)
    ACC = V(32); acc5 = lambda n, m: ACC + (m*4+n)*4
    HS = V(64); XS5 = lambda ks, m: HS + 8*(ks % 8) + 4*m
    WF = V(32); WR5 = lambda i: WF + 4*(i % 8)
    HR = V(16); HF = V(32); vO = V(2); vA5 = V(4)
    def setup5(a):
        a("s_lshl_b32 s28, s25, 3\ns_lshl_b32 s29, s3, 1\ns_add_u32 s28, s28, s29\ns_mul_i32 s29, s28, 114688")
        for m in range(2):
            a(f"s_add_u32 s31, s28, {m}\ns_lshr_b32 s32, s31, 4\ns_lshl_b32 s32, s32, 8\ns_and_b32 s31, s31, 15\ns_lshl_b32 s31, s31, 2\ns_add_u32 s31, s31, s32")
            a(f"v_bfe_u32 v{t2}, v{l}, 3, 1\nv_lshlrev_b32 v{t2}, 1, v{t2}\nv_bfe_u32 v{vH}, v{l}, 1, 2\nv_lshl_add_u32 v{t2}, v{vH}, 6, v{t2}\nv_and_or_b32 v{t2}, v{l}, 1, v{t2}\nv_add_u32 v{t2}, s31, v{t2}")
            a(f"v_lshlrev_b32 v{vO+m}, 11, v{t2}\nv_bfe_u32 v{t2}, v{l}, 4, 1\nv_lshl_add_u32 v{vO+m}, v{t2}, 5, v{vO+m}\nv_lshrrev_b32 v{t2}, 5, v{l}\nv_lshl_add_u32 v{vO+m}, v{t2}, 4, v{vO+m}")
        srd(a, 44, 10, H_SIZE, H_OFF)
        a(f"v_lshrrev_b32 v{t2}, 4, v{l}\nv_lshlrev_b32 v{vA5}, 10, v{t2}\nv_and_b32 v{t2}, 1, v{t2}\nv_lshl_add_u32 v{vA5}, v{t2}, 6, v{vA5}\nv_bfe_u32 v{t2}, v{l}, 2, 2\nv_lshl_add_u32 v{vA5}, v{t2}, 7, v{vA5}")
        a(f"v_lshrrev_b32 v{t2}, 1, v{t2}\nv_lshl_add_u32 v{vA5}, v{t2}, 5, v{vA5}\nv_and_b32 v{t2}, 3, v{l}\nv_lshl_add_u32 v{vA5}, v{t2}, 3, v{vA5}")
        for n in range(1, 4): a(f"v_xor_b32 v{vA5+n}, {32*n}, v{vA5}")
        for r in range(32): a(f"v_mov_b32 v{ACC+r}, 0")
        a("s_mov_b32 s36, 0")
    sync(a, name + "_b", "s_add_u32 s63, s49, 40\n", "s_lshr_b32 s63, s25, 1\ns_add_u32 s63, s63, 40\n", 1, 224, setup5, 200, None, "drain4")
    stamp(a, "bar4")
    def xload5(ks):
        pre = (stage_of(37, 36) + "s_lshl_b32 s37, s37, 12\ns_add_u32 s37, s37, s29\ns_add_u32 s38, s37, 114688\ns_add_u32 s36, s36, 1\n") if ks % 4 == 0 else ""
        return pre + "\n".join(f"buffer_load_dwordx4 {vr(XS5(ks,m),4)}, v{vX}, s[16:19], s{37+m} offen offset:{1024*(ks%4)} sc1" for m in range(2))
    hl = [f"buffer_load_dwordx4 {vr(HR+8*m+4*p,4)}, v{vO+m}, s[44:47], s27 offen offset:{64*p} sc1" for m in range(2) for p in range(2)]
    for k in range(7): a(xload5(k)); a(dma5(0) if k == 6 else hl[k-2] if k >= 2 else dummy)
    def wread5(idx):
        ks, n = (idx // 4) % 8, idx % 4
        return [f"ds_read_b64_tr_b16 {vr(WR5(idx)+2*h,2)}, v{vA5+n} offset:{4096*ks+512*h}" for h in range(2)]
    LA = 6
    for i in range(LA): a(wread5(i))
    a(f"s_mov_b32 s39, 14\n{name}_loop5:")
    for ks in range(8):
        for n in range(4):
            idx = ks*4 + n
            a(f"s_waitcnt vmcnt(19) lgkmcnt({2*LA-2})" if n == 0 else f"s_waitcnt lgkmcnt({2*LA-2})")
            mm = [f"{MF} {vr(acc5(n,m),4)}, {vr(WR5(idx),4)}, {vr(XS5(ks,m),4)}, {vr(acc5(n,m),4)}" for m in range(2)]
            if n & 1: mm.reverse()
            rd = wread5(idx+LA)
            a(mm[0])
            if (idx + LA) % 16 == 0:
                a("s_waitcnt vmcnt(12)\ns_barrier")
                if idx + LA == 32:
                    for q in range(4): a(f"v_xor_b32 v{vA5+q}, 32768, v{vA5+q}")
            a(rd[0]); a(mm[1]); a(rd[1])
            if n == 0: a(xload5(ks+7))
            if n == 1: a(dma5((ks+1) % 4))
            if idx == 31: a("s_sub_u32 s39, s39, 1\ns_cmp_lg_u32 s39, 0")
    a(f"s_cbranch_scc1 {name}_loop5")
    stamp(a, "p5loop")
    srd(a, 12, 58, 2048 * 2048)
    for k in range(16): a(f"v_lshlrev_b32 v{HF+2*k}, 16, v{HR+k}\nv_and_b32 v{HF+2*k+1}, 0xffff0000, v{HR+k}")
    for m in range(2):
        for p in range(2):
            b = acc5(2*p, m); h = HF + 16*m + 8*p
            for r in range(4): a(f"v_permlane16_swap_b32 v{b+r}, v{b+4+r}")
            for k in range(4): a(f"v_pk_add_f32 {vr(b+2*k,2)}, {vr(b+2*k,2)}, {vr(h+2*k,2)}")
            for k in range(4): a(cvt(h+k, b+2*k, b+2*k+1))
            a(f"buffer_store_dwordx4 {vr(h,4)}, v{vO+m}, s[12:15], s27 offen offset:{64*p}")
    stamp_flush(a, 0, 18, HS)
    a(f"s_waitcnt vmcnt(0)\n{name}_end:\ns_endpgm")
    return a.finish(), 256 + 80, 256, 163840
```

```python
from asmgen import *

Z1_OFF, Z1_SIZE = 0x0000000, 256 * 16384
WT_OFF, WT_SIZE = 0x0500000, 513 * 8192
Z2_OFF, Z2_SIZE = 0x0A00000, 256 * 16384
H_OFF, H_SIZE = 0x0F00000, 2048 * 2048
HN_OFF, HN_SIZE = 0x1400000, 2048 * 2048
HH_OFF, HH_SIZE = 0x1900000, 2048 * 3584 * 2
CNT_OFF = 0x2800000
LB = 114688
MF = "v_mfma_f32_16x16x32_bf16"
VAR = {}

def mfma(d, a, b, first): return f"{MF} {vr(d,4)}, {vr(a,4)}, {vr(b,4)}, {'0' if first else vr(d,4)}"
def cvt(d, a, b, na=False, nb=False): return f"v_cvt_pk_bf16_f32 v{d}, {'-' if na else ''}v{a}, {'-' if nb else ''}v{b}"
L_, J_, G_ = 1, 2, 3

def sincos(a, idxf, step, n, tc, ts, ta):
    for i in range(n): a(f"v_mul_f32 v{ta+i}, v{idxf+i}, v{step}")
    for i in range(n): a(f"v_cos_f32 v{tc+i}, v{ta+i}")
    for i in range(n): a(f"v_sin_f32 v{ts+i}, v{ta+i}")

def twiddle(re, im, c, s, t, inverse=False):
    o = []
    for h in (0, 2): o.append(f"v_pk_mul_f32 {vr(t+h,2)}, {vr(re+h,2)}, {vr(s+h,2)}")
    for h in (0, 2): o.append(f"v_pk_mul_f32 {vr(re+h,2)}, {vr(re+h,2)}, {vr(c+h,2)}")
    for h in (0, 2):
        o.append(f"v_pk_fma_f32 {vr(re+h,2)}, {vr(im+h,2)}, {vr(s+h,2)}, {vr(re+h,2)}" + (" neg_lo:[1,0,0] neg_hi:[1,0,0]" if inverse else ""))
    for h in (0, 2):
        o.append(f"v_pk_fma_f32 {vr(im+h,2)}, {vr(im+h,2)}, {vr(c+h,2)}, {vr(t+h,2)}" + ("" if inverse else " neg_lo:[0,0,1] neg_hi:[0,0,1]"))
    return o

def row_stats(a, sa, qa, sb, qb, ra, rb, t):
    for r in (sa, qa, sb, qb): a(f"v_add_f32 v{r}, v{r}, v{r+1}")
    a(f"v_permlane16_swap_b32 v{sa}, v{qa}\nv_permlane16_swap_b32 v{sb}, v{qb}")
    a(f"v_add_f32 v{sa}, v{sa}, v{qa}\nv_add_f32 v{sb}, v{sb}, v{qb}")
    a(f"v_permlane32_swap_b32 v{sa}, v{sb}")
    a(f"v_add_f32 v{sa}, v{sa}, v{sb}")
    for k in (8, 4, 2, 1): a(f"v_add_f32 v{sa}, v{sa}, v{sa} row_ror:{k}")
    a(f"v_mul_f32 v{sa}, {fhex(1/1024)}, v{sa}")
    a(f"v_readlane_b32 s40, v{sa}, 0\nv_readlane_b32 s41, v{sa}, 16\nv_readlane_b32 s42, v{sa}, 32\nv_readlane_b32 s43, v{sa}, 48")
    a(f"v_mov_b32 v{t}, s41\nv_mov_b32 v{t+1}, s43")
    a(f"v_fma_f32 v{t}, -s40, s40, v{t}\nv_fma_f32 v{t+1}, -s42, s42, v{t+1}")
    a(f"v_max_f32 v{t}, 0, v{t}\nv_max_f32 v{t+1}, 0, v{t+1}")
    a(f"v_add_f32 v{t}, {fhex(1e-5)}, v{t}\nv_add_f32 v{t+1}, {fhex(1e-5)}, v{t+1}")
    a(f"v_rsq_f32 v{ra}, v{t}\nv_rsq_f32 v{rb}, v{t+1}")
    a(f"v_mul_f32 v{ra+1}, s40, v{ra}\nv_mul_f32 v{rb+1}, s42, v{rb}")

def norm(p, r): return f"v_pk_fma_f32 {vr(p,2)}, {vr(p,2)}, {vr(r,2)}, {vr(r,2)} op_sel:[0,0,1] op_sel_hi:[1,0,1] neg_lo:[0,0,1] neg_hi:[0,0,1]"
ROWPAIR = "s_and_b32 s20, s2, 7\ns_lshr_b32 s21, s2, 3\ns_lshl_b32 s22, s20, 7\ns_lshl_b32 s23, s3, 5\ns_add_u32 s22, s22, s23\ns_add_u32 s22, s22, s21\ns_lshl_b32 s22, s22, 12"

def dft_block(a, B, colf, slotf, tc, ts, ta, step, order):
    for T in range(2):
        colf(T)
        a(f"v_cvt_f32_u32 v{step}, v{step}\nv_mul_f32 v{step}, {fhex(1/32)}, v{step}")
        sincos(a, slotf, step, 8, tc, ts, ta)
        for t in range(2):
            for x, w in enumerate(order):
                src = tc if w == "C" else ts
                for k in range(2): a(cvt(B[T][t]+2*x+k, src+4*t+2*k, src+4*t+2*k+1, w == "N", w == "N"))

class P1:
    def __init__(s, name, p2):
        s.name = name; s.W = p2.E; U = Alloc(p2.D + 4, p2.E)
        s.O = U(16); s.ad = U(2); s.vo = U(); s.kp = U(); s.jj = U(); s.jt = U(); s.WS = U(); s.so2 = U(); s.t0 = U(); s.t1 = U()
        s.lim = p2.D; s.tt = p2.ra
    def main(s, a):
        name = s.name; l, j, g = L_, J_, G_; V = Alloc(4, s.lim)
        W, vo, kp, jj, jt, ad, WS, so2, t0, t1, tt = s.W, s.vo, s.kp, s.jj, s.jt, s.ad, s.WS, s.so2, s.t0, s.t1, s.tt
        XL = LB + 20480
        a(ROWPAIR)
        voff = V(); xa = V(); X = V(16); P = V(32); zt = V(2)
        a(f"v_lshlrev_b32 v{voff}, 4, v{l}\ns_lshl_b32 s23, s3, 12\ns_add_u32 s23, s23, {XL}\ns_mov_b32 m0, s23")
        a("s_waitcnt lgkmcnt(0)")
        srd(a, 12, 4, 2048 * 2048)
        for n in range(4): a(f"buffer_load_dwordx4 v{voff}, s[12:15], s22 offen offset:{1024*n} lds")
        a(f"s_or_b32 s24, s2, s3\ns_cbranch_scc1 {name}_nz\nv_lshlrev_b32 v{zt}, 8, v{l}\nv_add_u32 v{zt}, {CNT_OFF}, v{zt}\nv_mov_b32 v{zt+1}, 0\nglobal_store_dword v{zt}, v{zt+1}, s[10:11] sc1\n{name}_nz:")
        a("s_bfe_u32 s26, s2, 0x30003\ns_lshr_b32 s25, s2, 6\ns_lshl_b32 s28, s26, 2\ns_lshl_b32 s29, s20, 7\ns_add_u32 s28, s28, s29\ns_and_b32 s29, s3, 1\ns_lshl_b32 s29, s29, 6\ns_add_u32 s28, s28, s29\ns_mul_i32 s28, s28, 1026")
        a("s_lshl_b32 s29, s25, 8\ns_add_u32 s28, s28, s29")
        a(f"v_and_b32 v{jj}, 3, v{l}\nv_mul_u32_u24 v{vo}, 1026, v{jj}\nv_and_b32 v{kp}, 60, v{l}\nv_lshl_add_u32 v{vo}, v{kp}, 1, v{vo}\nv_add_u32 v{vo}, s28, v{vo}")
        srd(a, 44, 52, 2048 * 1026); srd(a, 48, 54, 2048 * 1026)
        for q in range(4): a(f"s_mov_b32 s{32+q}, {(32*(q>>1)+1024*(q&1))*1026}")
        wl = [f"buffer_load_dwordx2 {vr(W+16*kh+4*q+2*arr,2)}, v{vo}, s[{44+4*arr}:{47+4*arr}], s{32+q} offen offset:{128*kh}" for q in range(4) for arr in range(2) for kh in range(2)]
        NW0 = VAR.get("nw0", 6)
        if NW0:
            a(f"s_barrier\ns_cmp_lt_u32 s3, 2\ns_cbranch_scc1 {name}_w0"); a(wl[:NW0]); a(f"{name}_w0:")
        stamp(a, "p1ld")
        sf = V(8); ta = V(8); tc = V(8); ts = V(8); step = V()
        C1 = [V(4) for _ in range(2)]; S1 = [V(4) for _ in range(2)]; N1 = [V(4) for _ in range(2)]
        C2 = [V(4) for _ in range(2)]; S2 = [V(4) for _ in range(2)]; X2 = [V(4) for _ in range(2)]
        TWc = [[V(4) for _ in range(2)] for _ in range(2)]; TWs = [[V(4) for _ in range(2)] for _ in range(2)]
        a(f"v_lshlrev_b32 v{step}, 2, v{g}\nv_cvt_f32_u32 v{sf}, v{step}")
        for i in range(1, 4): a(f"v_add_f32 v{sf+i}, 1.0, v{sf+i-1}")
        for i in range(4): a(f"v_add_f32 v{sf+4+i}, {fhex(16.0)}, v{sf+i}")
        for T in range(2):
            a(f"v_lshrrev_b32 v{step}, 2, v{j}\nv_lshlrev_b32 v{step}, 3, v{step}\nv_and_or_b32 v{step}, v{j}, 3, v{step}")
            if T: a(f"v_or_b32 v{step}, 4, v{step}")
            a(f"v_cvt_f32_u32 v{step}, v{step}\nv_mul_f32 v{step}, {fhex(1/32)}, v{step}")
            sincos(a, sf, step, 8, tc, ts, ta)
            for k in range(4):
                a(cvt(C1[T]+k, tc+2*k, tc+2*k+1)); a(cvt(S1[T]+k, ts+2*k, ts+2*k+1)); a(cvt(N1[T]+k, ts+2*k, ts+2*k+1, True, True))
            for i in range(8): a(f"v_mul_f32 v{ta+i}, {fhex(1/32)}, v{ta+i}")
            for i in range(8): a(f"v_cos_f32 v{TWc[T][i>>2]+(i&3)}, v{ta+i}\nv_sin_f32 v{TWs[T][i>>2]+(i&3)}, v{ta+i}")
        for T in range(2):
            a(f"v_or_b32 v{step}, {16*T}, v{j}\nv_cvt_f32_u32 v{step}, v{step}\nv_mul_f32 v{step}, {fhex(1/32)}, v{step}")
            sincos(a, sf, step, 8, tc, ts, ta)
            for k in range(4):
                a(cvt(C2[T]+k, tc+2*k, tc+2*k+1)); a(cvt(S2[T]+k, ts+2*k, ts+2*k+1))
                src = tc if T else ts
                a(cvt(X2[T]+k, src+2*k, src+2*k+1, True, True))
        wa = V(8); ra = voff; so = step
        a(f"v_lshrrev_b32 v{t0}, 2, v{l}\nv_lshlrev_b32 v{xa}, 6, v{t0}\nv_lshl_add_u32 v{xa}, v{jj}, 3, v{xa}\nv_add_u32 v{xa}, s23, v{xa}")
        a(f"s_mul_i32 s24, s3, 2112\ns_add_u32 s24, s24, {LB}\nv_lshlrev_b32 v{t0}, 5, v{j}\nv_lshl_add_u32 v{t0}, v{g}, 3, v{t0}\nv_lshrrev_b32 v{t1}, 3, v{j}\nv_cmp_eq_u32 vcc, 1, v{t1}\nv_lshl_add_u32 v{t1}, v{t1}, 2, s24")
        for i in range(8):
            a(f"v_add_u32 v{ta}, {i}, v{t0}\nv_sub_u32 v{ta+1}, 512, v{ta}\nv_and_b32 v{ta+1}, 255, v{ta+1}\nv_cndmask_b32 v{ta}, v{ta}, v{ta+1}, vcc")
            a(f"v_lshrrev_b32 v{ta+1}, 5, v{ta}\nv_add_u32 v{ta}, v{ta}, v{ta+1}\nv_lshl_add_u32 v{wa+i}, v{ta}, 3, v{t1}")
        a(f"v_bfe_u32 v{t0}, v{l}, 2, 2\nv_mul_u32_u24 v{ra}, 2112, v{t0}\nv_lshl_add_u32 v{ra}, v{g}, 5, v{ra}\nv_lshl_add_u32 v{ra}, v{jj}, 3, v{ra}")
        a(f"s_mul_i32 s24, s3, 1056\ns_add_u32 s24, s24, {LB}\nv_add_u32 v{ra}, s24, v{ra}")
        a("s_lshr_b32 s24, s21, 4\ns_lshl_b32 s24, s24, 7\ns_lshl_b32 s27, s20, 4\ns_add_u32 s24, s24, s27\ns_and_b32 s27, s21, 15\ns_add_u32 s24, s24, s27")
        a("s_bfe_u32 s27, s24, 0x20002\ns_lshl_b32 s24, s24, 6\ns_lshl_b32 s28, s3, 21\ns_add_u32 s28, s28, s24")
        a(f"v_xor_b32 v{t0}, s27, v{jj}\nv_lshlrev_b32 v{t0}, 4, v{t0}\nv_lshrrev_b32 v{t1}, 2, v{l}\nv_lshl_add_u32 v{so}, v{t1}, 14, v{t0}")
        a(f"s_lshr_b32 s62, s2, 7\ns_and_b32 s24, s2, 127\ns_lshl_b32 s24, s24, 3\ns_lshl_b32 s27, s62, 10")
        a(f"v_lshrrev_b32 v{jt}, 3, v{l}\nv_add_u32 v{jt}, s24, v{jt}\nv_bfe_u32 v{t0}, v{l}, 1, 1\nv_lshl_add_u32 v{t0}, v{t0}, 10, v{jt}")
        a(f"v_sub_u32 v{t1}, 2048, v{t0}\nv_and_b32 v{t1}, 2047, v{t1}\nv_and_b32 v{WS}, 4, v{l}\nv_cmp_ne_u32 vcc, 0, v{WS}\nv_and_b32 v{WS}, 1, v{l}")
        a(f"v_cndmask_b32 v{t0}, v{t0}, v{t1}, vcc\nv_cmp_ne_u32 vcc, 0, v{WS}\nv_mul_u32_u24 v{t0}, 1026, v{t0}\nv_add_u32 v{t0}, s27, v{t0}")
        a(f"v_mov_b32 v{ad}, s52\nv_mov_b32 v{t1}, s54\nv_cndmask_b32 v{ad}, v{ad}, v{t1}, vcc\nv_mov_b32 v{ad+1}, s53\nv_mov_b32 v{t1}, s55\nv_cndmask_b32 v{ad+1}, v{ad+1}, v{t1}, vcc")
        a(f"v_add_co_u32 v{ad}, vcc, v{ad}, v{t0}\nv_addc_co_u32 v{ad+1}, vcc, 0, v{ad+1}, vcc")
        a(f"s_lshl_b32 s24, s25, 7\nv_add_u32 v{kp}, s24, v{kp}")
        a("s_lshr_b32 s24, s26, 2\ns_lshl_b32 s24, s24, 12\ns_lshl_b32 s27, s20, 8\ns_and_b32 s25, s27, 0x400\ns_add_u32 s27, s27, s25\ns_add_u32 s24, s24, s27\ns_and_b32 s27, s26, 3\ns_lshl_b32 s27, s27, 6\ns_add_u32 s24, s24, s27")
        a(f"s_and_b32 s27, s3, 1\ns_lshl_b32 s27, s27, 10\ns_add_u32 s24, s24, s27\nv_lshlrev_b32 v{so2}, 13, v{kp}\nv_lshl_add_u32 v{so2}, v{jj}, 4, v{so2}\nv_add_u32 v{so2}, s24, v{so2}")
        srd(a, 16, 10, Z1_SIZE, Z1_OFF)
        stamp(a, "p1const")
        a(f"s_cmp_lt_u32 s3, 2\ns_cbranch_scc1 {name}_x0\ns_waitcnt vmcnt({NW0})\ns_branch {name}_x1\n{name}_x0:\ns_waitcnt vmcnt(0)\n{name}_x1:")
        for e in range(2):
            for tq in range(2):
                for h in range(2): a(f"ds_read_b64_tr_b16 {vr(X+8*e+4*tq+2*h,2)}, v{xa} offset:{2048*e+1024*h+32*tq}")
        a(f"s_or_b32 s24, s2, s3\ns_cbranch_scc1 {name}_nz2\nv_mov_b32 v{zt}, 1\nv_mov_b32 v{zt+1}, 0\nglobal_store_dword v{zt+1}, v{zt}, s[60:61] sc1\n{name}_nz2:")
        a(f"s_cmp_lt_u32 s3, 2\ns_cbranch_scc1 {name}_ns"); a(wl[NW0:])
        a(f"s_cmp_lg_u32 s3, 2\ns_cbranch_scc1 {name}_ns\nglobal_load_ushort v{WS}, {vr(ad,2)}, off\n{name}_ns:")
        stamp(a, "p1x")
        st = tc; rn = ts
        for e in range(2):
            for i in range(8):
                if not i & 1: a(f"s_waitcnt lgkmcnt({7-4*e-(i>>1)})")
                a(f"v_lshlrev_b32 v{P+16*e+2*i}, 16, v{X+8*e+i}\nv_and_b32 v{P+16*e+2*i+1}, 0xffff0000, v{X+8*e+i}")
                p = vr(P+16*e+2*i, 2); s_ = vr(st+4*e, 2); q_ = vr(st+4*e+2, 2)
                if i == 0: a(f"v_pk_mul_f32 {q_}, {p}, {p}")
                elif i == 1: a(f"v_pk_add_f32 {s_}, {p}, {vr(P+16*e,2)}\nv_pk_fma_f32 {q_}, {p}, {p}, {q_}")
                else: a(f"v_pk_add_f32 {s_}, {p}, {s_}\nv_pk_fma_f32 {q_}, {p}, {p}, {q_}")
        row_stats(a, st, st+2, st+4, st+6, rn, rn+2, tt)
        for k in range(16): a(norm(P+2*k, rn+2*(k>>3)))
        for k in range(16): a(cvt(X+k, P+2*k, P+2*k+1))
        A1 = [[X + 8*e + 4*tq for tq in range(2)] for e in range(2)]
        D = sf
        D1 = lambda tq, T, part: D + ((T*2+tq)*2+part)*4
        for T in range(2):
            for tq in range(2): a(mfma(D1(tq,T,0), A1[0][tq], C1[T], True)); a(mfma(D1(tq,T,1), A1[1][tq], C1[T], True))
            for tq in range(2): a(mfma(D1(tq,T,0), A1[1][tq], S1[T], False)); a(mfma(D1(tq,T,1), A1[0][tq], N1[T], False))
        A2 = [[X + 8*T + 4*p for p in range(2)] for T in range(2)]
        D2 = lambda T1, T2, part: P + ((T2*2+part)*2+T1)*4
        def outw(T):
            o = []
            for part in range(2):
                for r in range(4):
                    d = D2(T,0,part)+r
                    o += [cvt(d, d, D2(T,1,part)+r), f"ds_write_b32 v{wa+4*T+r}, v{d} offset:{part*8448}"]
            return o
        for T in range(2):
            for tq in range(2):
                a(twiddle(D1(tq,T,0), D1(tq,T,1), TWc[T][tq], TWs[T][tq], tt))
                for part in range(2):
                    for k in range(2): a(cvt(A2[T][part]+2*tq+k, D1(tq,T,part)+2*k, D1(tq,T,part)+2*k+1))
            mm = []
            for T2 in range(2):
                mm += [mfma(D2(T,T2,0), A2[T][0], C2[T2], True), mfma(D2(T,T2,1), A2[T][0] if T2 else A2[T][1], S2[T2] if T2 else C2[T2], True)]
            for T2 in range(2):
                mm += [mfma(D2(T,T2,0), A2[T][1], S2[T2], False), mfma(D2(T,T2,1), A2[T][1] if T2 else A2[T][0], X2[T2], False)]
            a(interleave(mm, outw(0), 2) if T else mm)
        a(outw(1))
        stamp(a, "p1dft")
        fg = s.O
        a(f"s_cmp_lg_u32 s3, 0\ns_cbranch_scc1 {name}_nf\nv_mov_b32 v{t0}, 0\nglobal_load_dword v{fg}, v{t0}, s[60:61] sc1\n{name}_nf:")
        a(f"s_waitcnt lgkmcnt(0)\ns_barrier\ns_cmp_ge_u32 s3, 2\ns_cbranch_scc1 {name}_nst")
        stamp(a, "p1bar")
        for n in range(8):
            o = n*128 + (n >> 1)*8
            a(f"ds_read_b64_tr_b16 {vr(P+4*n,2)}, v{ra} offset:{o}\nds_read_b64_tr_b16 {vr(P+4*n+2,2)}, v{ra} offset:{o+8448}")
        for n in range(8): a(f"s_waitcnt lgkmcnt({14-2*n})\nbuffer_store_dwordx4 {vr(P+4*n,4)}, v{so}, s[16:19], s28 offen sc1\ns_add_u32 s28, s28, 0x40000")
        a(f"{name}_nst:")
    def drain(s, a):
        name = s.name; fg = s.O; t0 = s.t0
        a(f"s_cmp_ge_u32 s3, 2\ns_cbranch_scc1 {name}_dd\ns_waitcnt vmcnt(0)\ns_cmp_lg_u32 s3, 0\ns_cbranch_scc1 {name}_dd")
        a(f"s_mov_b32 s63, 0x40000\n{name}_ip:\nv_readfirstlane_b32 s40, v{fg}\ns_cmp_lg_u32 s40, 0\ns_cbranch_scc1 {name}_dd\ns_sub_u32 s63, s63, 1\ns_cbranch_scc1 {name}_dd")
        a(f"v_mov_b32 v{t0}, 0\nglobal_load_dword v{fg}, v{t0}, s[60:61] sc1\ns_waitcnt vmcnt(0)\ns_branch {name}_ip\n{name}_dd:")
    def filt(s, a):
        name = s.name; l = L_
        W, O, kp, jj, jt, WS, so2, t0, t1 = s.W, s.O, s.kp, s.jj, s.jt, s.WS, s.so2, s.t0, s.t1
        a(f"s_cmp_lt_u32 s3, 2\ns_cbranch_scc1 {name}_fd")
        srd(a, 36, 10, WT_SIZE, WT_OFF)
        a(f"s_mov_b32 s40, 0x05040100\ns_mov_b32 s41, 0x07060302\nv_cmp_ne_u32 vcc, 0, v{kp}\ns_waitcnt vmcnt(0)")
        stamp(a, "p1w")
        for n, (kh, e) in enumerate([(1, 0), (1, 1), (1, 2), (1, 3), (0, 1), (0, 2), (0, 3), (0, 0)]):
            o = O + 4*(n & 3)
            for q in range(4): a(f"v_perm_b32 v{o+q}, v{W+16*kh+4*q+2+(e>>1)}, v{W+16*kh+4*q+(e>>1)}, s{40+(e&1)}")
            a(f"s_mov_b32 s42, {(64*kh+e)*8192}")
            if n == 7: a("s_mov_b64 exec, vcc")
            a(f"buffer_store_dwordx4 {vr(o,4)}, v{so2}, s[36:39], s42 offen sc1")
        a(f"s_mov_b64 exec, -1\ns_cmp_lg_u32 s3, 2\ns_cbranch_scc1 {name}_ns2")
        s3_ = s.ad
        a(f"v_bfe_u32 v{t0}, v{jt}, 4, 1\nv_lshlrev_b32 v{s3_}, 12, v{t0}\nv_bfe_u32 v{t0}, v{jt}, 9, 1\nv_lshl_add_u32 v{s3_}, v{t0}, 11, v{s3_}")
        a(f"v_bfe_u32 v{t0}, v{jt}, 6, 1\nv_lshl_add_u32 v{s3_}, v{t0}, 10, v{s3_}\nv_bfe_u32 v{t0}, v{jt}, 7, 2\nv_lshl_add_u32 v{s3_}, v{t0}, 8, v{s3_}")
        a(f"v_and_b32 v{t0}, 15, v{jt}\nv_lshl_add_u32 v{s3_}, v{t0}, 4, v{s3_}\nv_bfe_u32 v{t0}, v{jt}, 5, 1\nv_lshl_add_u32 v{s3_}, v{t0}, 3, v{s3_}")
        a(f"v_lshl_add_u32 v{s3_}, v{jj}, 1, v{s3_}\ns_lshl_b32 s42, s62, 22")
        a(f"v_lshlrev_b32 v{WS}, 16, v{WS}\nv_lshlrev_b32 v{t1}, 31, v{l}\nv_mov_b32 v{t0}, 0\nv_mov_b32 v{t0}, v{WS} row_shl:4 row_mask:0xf bank_mask:0xf")
        a(f"v_xor_b32 v{t0}, v{t0}, v{t1}\nv_add_f32 v{t0}, v{t0}, v{WS}\nv_mul_f32 v{t0}, 0.5, v{t0}"); a(cvt(t0, t0, t0))
        a(f"s_mov_b32 s40, 0x0f0f0f0f\ns_mov_b32 s41, s40\ns_mov_b64 exec, s[40:41]\nbuffer_store_short v{t0}, v{s3_}, s[36:39], s42 offen sc1\ns_mov_b64 exec, -1\n{name}_ns2:")
        a(f"s_and_b32 s63, s2, 15\ns_add_u32 s63, s63, 48\ns_lshl_b32 s63, s63, 8\ns_add_u32 s63, s63, {CNT_OFF}\nv_mov_b32 v{t0}, s63\nv_mov_b32 v{t1}, 1\ns_waitcnt vmcnt(0)")
        stamp(a, "p1wt")
        a(f"s_mov_b64 exec, 1\nglobal_atomic_add v{t0}, v{t1}, s[10:11] sc1\ns_mov_b64 exec, -1\n{name}_fd:")

class P2:
    def __init__(s, name):
        s.name = name; V = Alloc(4)
        s.vo = V(); s.step = V(); s.W = V(32)
        s.sf = V(8); s.tc = V(8); s.ta = V(8); s.ts = V(8)
        s.B = [[V(6) for _ in range(2)] for _ in range(2)]; s.BR = [[V(6) for _ in range(2)] for _ in range(2)]
        s.TWc = [[V(4) for _ in range(2)] for _ in range(2)]; s.TWs = [[V(4) for _ in range(2)] for _ in range(2)]
        s.MC = V(16); s.MS = V(16); s.D = V(32); s.E = V(32)
        s.ra = V(); s.xa = V(); s.pa = V(); s.so = V(); s.ow = V(); s.t0 = V()
    def pre(s, a):
        l, j, g = L_, J_, G_
        vo, step, sf, tc, ta, ts, t0 = s.vo, s.step, s.sf, s.tc, s.ta, s.ts, s.t0
        a("s_and_b32 s20, s2, 7\ns_lshl_b32 s20, s20, 5\ns_lshr_b32 s21, s2, 3\ns_add_u32 s20, s20, s21")
        a(f"s_lshl_b32 s21, s3, 12\ns_lshl_b32 s22, s20, 14\ns_add_u32 s22, s22, s21\ns_add_u32 s21, s21, {LB}\nv_lshlrev_b32 v{vo}, 4, v{l}")
        a("s_sub_u32 s23, 512, s20\ns_add_u32 s24, s3, 1\ns_bitcmp1_b32 s24, 1\ns_cselect_b32 s23, s23, s20\ns_xor_b32 s28, s3, 3")
        a(f"s_cmp_lg_u32 s20, 0\ns_cbranch_scc1 {s.name}_reg\ns_xor_b32 s28, s3, 1\ns_cmp_ge_u32 s3, 2\ns_cselect_b32 s23, 256, s23\n{s.name}_reg:")
        a("s_lshl_b32 s23, s23, 13\ns_add_u32 s24, s23, 4096")
        srd(a, 12, 10, Z1_SIZE, Z1_OFF); srd(a, 16, 10, WT_SIZE, WT_OFF); srd(a, 44, 10, Z2_SIZE, Z2_OFF)
        a(f"s_lshl_b32 s28, s28, 13\ns_add_u32 s28, s28, {LB+16384}\nv_add_u32 v{s.pa}, s28, v{vo}\ns_lshl_b32 s28, s3, 13\ns_add_u32 s28, s28, {LB+16384}\nv_add_u32 v{s.xa}, s28, v{vo}")
        a(f"v_lshlrev_b32 v{step}, 2, v{g}\nv_cvt_f32_u32 v{sf}, v{step}")
        for i in range(1, 4): a(f"v_add_f32 v{sf+i}, 1.0, v{sf+i-1}")
        for i in range(4): a(f"v_add_f32 v{sf+4+i}, {fhex(16.0)}, v{sf+i}")
        dft_block(a, s.B, lambda T: a(f"v_or_b32 v{step}, {16*T}, v{j}"), sf, tc, ts, ta, step, "NCS")
        a(f"v_bfe_u32 v{t0}, v{l}, 2, 2\nv_xor_b32 v{t0}, s3, v{t0}\nv_lshlrev_b32 v{t0}, 4, v{t0}\nv_lshl_add_u32 v{s.ra}, v{l}, 6, v{t0}\nv_add_u32 v{s.ra}, {LB}, v{s.ra}")
        for T in range(2):
            a(f"v_or_b32 v{step}, {16*T}, v{j}\nv_cvt_f32_u32 v{step}, v{step}\nv_mul_f32 v{step}, {fhex(1/1024)}, v{step}")
            for i in range(8): a(f"v_mul_f32 v{ta+i}, v{sf+i}, v{step}")
            for i in range(8): a(f"v_cos_f32 v{s.TWc[T][i>>2]+(i&3)}, v{ta+i}\nv_sin_f32 v{s.TWs[T][i>>2]+(i&3)}, v{ta+i}")
        a(f"s_bitcmp1_b32 s3, 0\ns_cselect_b32 s25, {fhex(-1.0)}, {fhex(1.0)}\ns_mov_b32 s26, {fhex(1/64)}")
        for T in range(2):
            a(f"v_or_b32 v{step}, {16*T}, v{j}\nv_cvt_f32_u32 v{step}, v{step}\nv_mul_f32 v{step}, {fhex(1/2048)}, v{step}")
            for i in range(8): a(f"v_fma_f32 v{ta+i}, v{sf+i}, s26, v{step}")
            for i in range(8): a(f"v_cos_f32 v{tc+i}, v{ta+i}\nv_sin_f32 v{ts+i}, v{ta+i}")
            for i in range(8): a(f"v_mul_f32 v{s.MC+8*T+i}, s25, v{tc+i}\nv_mul_f32_e64 v{s.MS+8*T+i}, s25, -v{ts+i}")
        a("s_bfe_u32 s27, s20, 0x20001")
        dft_block(a, s.BR, lambda T: a(f"v_xor_b32 v{step}, s27, v{j}\nv_or_b32 v{step}, {16*T}, v{step}"), sf, tc, ts, ta, step, "NCS")
        a(f"s_bfe_u32 s27, s20, 0x10003\ns_xor_b32 s27, s27, s3\nv_bfe_u32 v{t0}, v{l}, 1, 2\nv_xor_b32 v{t0}, s27, v{t0}\nv_lshlrev_b32 v{t0}, 4, v{t0}\nv_lshl_add_u32 v{s.ow}, v{l}, 6, v{t0}\nv_add_u32 v{s.ow}, {LB}, v{s.ow}")
        a(f"v_bfe_u32 v{t0}, v{l}, 3, 2\nv_xor_b32 v{t0}, v{l}, v{t0}\nv_and_b32 v{t0}, 3, v{t0}\nv_lshlrev_b32 v{t0}, 4, v{t0}\nv_lshrrev_b32 v{step}, 2, v{l}\nv_lshl_add_u32 v{s.so}, v{step}, 17, v{t0}")
        a("s_lshl_b32 s32, s3, 14\ns_lshl_b32 s28, s20, 6\ns_add_u32 s32, s32, s28\ns_add_u32 s33, s32, 0x10000\ns_add_u32 s34, s32, 0x200000\ns_add_u32 s35, s32, 0x210000")
        a(f"s_lshr_b32 s28, s3, 1\ns_or_b32 s29, s28, s20\ns_cbranch_scc1 {s.name}_nsp\ns_lshl_b32 s28, s3, 13\ns_add_u32 s28, s28, {LB+16384}")
        for T1 in range(2):
            a(f"v_sub_u32 v{tc}, {32-16*T1}, v{j}\nv_and_b32 v{tc}, 31, v{tc}\nv_cmp_eq_u32 vcc, 0, v{tc}\nv_lshrrev_b32 v{tc+1}, 4, v{tc}\nv_and_b32 v{tc}, 15, v{tc}\nv_lshlrev_b32 v{tc}, 4, v{tc}")
            a(f"v_lshl_add_u32 v{tc}, v{tc+1}, 12, v{tc}\nv_add_u32 v{tc}, s28, v{tc}\nv_cndmask_b32 v{tc+1}, 31, 32, vcc\nv_lshlrev_b32 v{tc+2}, 2, v{g}\nv_sub_u32 v{tc+1}, v{tc+1}, v{tc+2}")
            for q in range(8):
                a(f"v_subrev_u32 v{tc+2}, {16*(q>>2)+(q&3)}, v{tc+1}\nv_bfe_u32 v{tc+3}, v{tc+2}, 4, 1\nv_lshl_add_u32 v{tc+4}, v{tc+3}, 11, v{tc}\nv_bfe_u32 v{tc+3}, v{tc+2}, 2, 2\nv_lshl_add_u32 v{tc+4}, v{tc+3}, 8, v{tc+4}")
                a(f"v_and_b32 v{tc+3}, 3, v{tc+2}\nv_lshl_add_u32 v{tc+4}, v{tc+3}, 2, v{tc+4}\nv_accvgpr_write_b32 a{8*T1+q}, v{tc+4}")
        a(f"{s.name}_nsp:")
    def main(s, a, hook):
        W, MC, MS, D, E, B, BR = s.W, s.MC, s.MS, s.D, s.E, s.B, s.BR
        X = s.sf; tt = s.ta; u = s.ts
        a("s_mov_b32 m0, s21")
        for n in range(4): a(f"buffer_load_dwordx4 v{s.vo}, s[12:15], s22 offen offset:{1024*n} sc1 lds")
        pl = f"global_load_dword v{s.t0}, v{s.step}, s[10:11] sc1"
        a(f"v_lshlrev_b32 v{s.step}, 8, v{J_}\nv_add_u32 v{s.step}, {CNT_OFF + 48*256}, v{s.step}"); a(pl)
        a(f"s_waitcnt vmcnt(1)\ns_barrier")
        stamp(a, "p2ld")
        for n in range(4): a(f"ds_read_b128 {vr(X+4*n,4)}, v{s.ra} offset:{4096*n}")
        acc = lambda base, x, y, part: base + ((x*2+y)*2+part)*4
        def stage(dst, cst, data_is_a, waits=None):
            o = []
            for x in range(2):
                for t in range(2):
                    if waits: o.append(f"s_waitcnt lgkmcnt({3-2*x-t})")
                    for y in range(2):
                        for part in range(2):
                            c = cst[y][t] + (2 if part == 0 else 0); d = X+4*(2*x+t)
                            o.append(mfma(dst(x,y,part), d, c, t == 0) if data_is_a else mfma(dst(x,y,part), c, d, t == 0))
            return o
        pack = lambda dst, re, im: [cvt(dst, re, re+1), cvt(dst+1, re+2, re+3), cvt(dst+2, im, im+1), cvt(dst+3, im+2, im+3)]
        D1 = lambda Tq, T1, part: acc(D, Tq, T1, part)
        a(stage(D1, B, True, waits=True))
        for T1 in range(2):
            for Tq in range(2):
                a(twiddle(D1(Tq,T1,0), D1(Tq,T1,1), s.TWc[T1][Tq], s.TWs[T1][Tq], tt)); a(pack(X+4*(2*T1+Tq), D1(Tq,T1,0), D1(Tq,T1,1)))
        a(f"s_mov_b32 s63, 0x40000\n{s.name}_wp:\ns_waitcnt vmcnt(0)\nv_cmp_ne_u32 vcc, 32, v{s.t0}\ns_sub_u32 s63, s63, 1\ns_cbranch_scc1 {s.name}_wd\ns_cbranch_vccz {s.name}_wd")
        a(f"{pl}\ns_branch {s.name}_wp\n{s.name}_wd:")
        stamp(a, "p2w")
        for n in range(8): a(f"buffer_load_dwordx4 {vr(W+4*n,4)}, v{s.vo}, s[16:19], s{23+n//4} offen offset:{1024*(n%4)} sc1")
        nx = hook("p2a")
        D2 = lambda T1, T2, part: acc(E, T1, T2, part)
        def coef(n):
            e0 = 2*n; w = W + 4*n; o = []
            for k in range(2):
                o += [f"v_lshlrev_b32 v{u+k}, 16, v{w+2*k}", f"v_and_b32 v{u+2+k}, 0xffff0000, v{w+2*k}", f"v_lshlrev_b32 v{u+4+k}, 16, v{w+2*k+1}", f"v_and_b32 v{u+6+k}, 0xffff0000, v{w+2*k+1}"]
            o += [f"v_pk_add_f32 {vr(w,2)}, {vr(u,2)}, {vr(u+4,2)}", f"v_pk_add_f32 {vr(w+2,2)}, {vr(u+2,2)}, {vr(u+6,2)}",
                  f"v_pk_add_f32 {vr(u,2)}, {vr(u,2)}, {vr(u+4,2)} neg_lo:[0,1] neg_hi:[0,1]", f"v_pk_add_f32 {vr(u+2,2)}, {vr(u+2,2)}, {vr(u+6,2)} neg_lo:[0,1] neg_hi:[0,1]",
                  f"v_pk_fma_f32 {vr(w,2)}, {vr(u,2)}, {vr(MS+e0,2)}, {vr(w,2)}", f"v_pk_fma_f32 {vr(w+2,2)}, {vr(u+2,2)}, {vr(MS+e0,2)}, {vr(w+2,2)}",
                  f"v_pk_mul_f32 {vr(MS+e0,2)}, {vr(u,2)}, {vr(MC+e0,2)}", f"v_pk_mul_f32 {vr(MC+e0,2)}, {vr(u+2,2)}, {vr(MC+e0,2)}"]
            return o
        a(stage(D2, B, False))
        for n in range(8): a(f"ds_write_b128 v{s.xa}, {vr(E+4*n,4)} offset:{1024*n}")
        a("s_waitcnt lgkmcnt(0)\ns_barrier")
        a(f"s_cmp_lg_u32 s29, 0\ns_cbranch_scc1 {s.name}_rd")
        for q in range(16):
            a(f"v_accvgpr_read_b32 v{s.t0}, a{q}")
            for part in range(2): a(f"ds_read_b32 v{D+8*(q>>2)+4*part+(q&3)}, v{s.t0} offset:{1024*part}")
        a("s_waitcnt lgkmcnt(0)")
        for q in range(16): a(f"v_xor_b32 v{D+8*(q>>2)+4+(q&3)}, 0x80000000, v{D+8*(q>>2)+4+(q&3)}")
        a(f"s_branch {s.name}_mid\n{s.name}_rd:")
        for n in range(8): a(f"ds_read_b128 {vr(D+4*n,4)}, v{s.pa} offset:{1024*n}")
        a(f"{s.name}_mid:")
        for n in range(8): a(f"s_waitcnt vmcnt({7-n+nx})"); a(coef(n))
        stamp(a, "p2mid")
        for T1 in range(2):
            for T2 in range(2):
                n = T1*2+T2
                if n == 0: a("s_waitcnt lgkmcnt(0)")
                for h in (0, 2):
                    e0 = 4*n + h; ar_, ai, br, bi = vr(W+2*e0,2), vr(W+2*e0+2,2), vr(MS+e0,2), vr(MC+e0,2)
                    wr, wi = vr(D2(T1,T2,0)+h,2), vr(D2(T1,T2,1)+h,2)
                    orr, oi = vr(acc(D,T1,T2,0)+h,2), vr(acc(D,T1,T2,1)+h,2)
                    x, y = vr(tt+h,2), vr(tt+4+h,2)
                    a(f"v_pk_mul_f32 {x}, {ar_}, {wr}\nv_pk_mul_f32 {y}, {ar_}, {wi} neg_lo:[1,0] neg_hi:[1,0]")
                    a(f"v_pk_fma_f32 {x}, {ai}, {wi}, {x} neg_lo:[1,0,0] neg_hi:[1,0,0]\nv_pk_fma_f32 {y}, {ai}, {wr}, {y} neg_lo:[1,0,0] neg_hi:[1,0,0]")
                    a(f"v_pk_fma_f32 {x}, {br}, {oi}, {x} neg_lo:[1,0,0] neg_hi:[1,0,0]\nv_pk_fma_f32 {y}, {br}, {orr}, {y} neg_lo:[1,0,0] neg_hi:[1,0,0]")
                    a(f"v_pk_fma_f32 {x}, {bi}, {orr}, {x} neg_lo:[1,0,0] neg_hi:[1,0,0]\nv_pk_fma_f32 {y}, {bi}, {oi}, {y}")
                a(pack(X+4*n, tt, tt+4))
        DA = lambda T1, Tq, part: acc(D, T1, Tq, part)
        a(stage(DA, B, True))
        for Tq in range(2):
            for T1 in range(2):
                a(twiddle(DA(T1,Tq,0), DA(T1,Tq,1), s.TWc[Tq][T1], s.TWs[Tq][T1], tt)); a(pack(X+4*(2*Tq+T1), DA(T1,Tq,0), DA(T1,Tq,1)))
        DB = lambda Tq, Tp, part: acc(E, Tq, Tp, part)
        a(stage(DB, BR, False))
        a(f"v_add_u32 v{s.vo}, s21, v{s.vo}\ns_mul_i32 s28, s3, 3072\nv_subrev_u32 v{s.vo}, s28, v{s.vo}")
        for n in range(4):
            o = D + 4*n
            for r in range(4): a(cvt(o+r, DB(n>>1,n&1,0)+r, DB(n>>1,n&1,1)+r, False, True))
            a(f"ds_write_b128 v{s.ow}, {vr(o,4)} offset:{4096*n}")
        a("s_waitcnt lgkmcnt(0)\ns_barrier")
        for n in range(4): a(f"ds_read_b128 {vr(E+4*n,4)}, v{s.vo} offset:{4096*n}")
        for n in range(4): a(f"s_waitcnt lgkmcnt({3-n})\nbuffer_store_dwordx4 {vr(E+4*n,4)}, v{s.so}, s[44:47], s{32+n} offen sc1")

class P3:
    def __init__(s, name):
        s.name = name; V = Alloc(4, 232)
        s.vo = V(); s.xo = V(); s.XR = V(16)
        s.sf = V(8); s.kf = V(8); s.ta = V(8); s.tc = V(8); s.ts = V(8)
        s.B1 = [[[V(4) for _ in range(2)] for _ in range(2)] for _ in range(2)]
        s.B2 = [[V(6) for _ in range(2)] for _ in range(2)]
        s.TWc = [[V(4) for _ in range(2)] for _ in range(2)]; s.TWs = [[V(4) for _ in range(2)] for _ in range(2)]
        s.ra = V(2); s.sox = V(4); s.D = V(32); s.E = V(32)
        s.step = V(); s.t0 = V(); s.t1 = V(); s.sg = V(); s.wa = V()
    def xloads(s, a):
        l, j, g = L_, J_, G_
        a(ROWPAIR)
        a(f"v_lshlrev_b32 v{s.xo}, 6, v{j}\nv_lshl_add_u32 v{s.xo}, v{g}, 4, v{s.xo}")
        srd(a, 16, 4, 2048 * 2048)
        for n in range(4): a(f"buffer_load_dwordx4 {vr(s.XR+4*n,4)}, v{s.xo}, s[16:19], s22 offen offset:{1024*n}")
    def pre(s, a):
        l, j, g = L_, J_, G_
        sf, kf, ta, tc, ts, step, t0, t1, sg, ra = s.sf, s.kf, s.ta, s.tc, s.ts, s.step, s.t0, s.t1, s.sg, s.ra
        a(f"s_lshl_b32 s23, s3, 12\ns_lshl_b32 s25, s2, 14\ns_add_u32 s24, s25, s23\ns_add_u32 s23, s23, {LB}\nv_lshlrev_b32 v{s.vo}, 4, v{l}")
        srd(a, 12, 10, Z2_SIZE, Z2_OFF); srd(a, 16, 10, HN_SIZE, HN_OFF)
        a(f"v_lshlrev_b32 v{step}, 2, v{g}\nv_cvt_f32_u32 v{sf}, v{step}")
        for i in range(1, 4): a(f"v_add_f32 v{sf+i}, 1.0, v{sf+i-1}")
        for i in range(4): a(f"v_add_f32 v{sf+4+i}, {fhex(16.0)}, v{sf+i}")
        a(f"v_and_b32 v{t0}, 1, v{g}\nv_cvt_f32_u32 v{t1}, v{t0}\nv_mul_u32_u24 v{t0}, 7, v{t0}\nv_lshl_add_u32 v{t0}, v{g}, 3, v{t0}\nv_cvt_f32_u32 v{kf}, v{t0}\nv_fma_f32 v{t1}, v{t1}, -2.0, 1.0")
        for i in range(1, 8): a(f"v_add_f32 v{kf+i}, v{kf+i-1}, v{t1}")
        a(f"v_lshrrev_b32 v{t0}, 1, v{g}\nv_cvt_f32_u32 v{t1}, v{t0}\nv_fma_f32 v{sg}, v{t1}, -2.0, 1.0\ns_mov_b32 s26, {fhex(2.0**-21)}")
        for T in range(2):
            a(f"v_lshrrev_b32 v{step}, 2, v{j}\nv_lshlrev_b32 v{step}, 3, v{step}\nv_and_or_b32 v{step}, v{j}, 3, v{step}")
            if T: a(f"v_or_b32 v{step}, 4, v{step}")
            a(f"v_cvt_f32_u32 v{step}, v{step}\nv_mul_f32 v{step}, {fhex(1/32)}, v{step}")
            sincos(a, kf, step, 8, tc, ts, ta)
            for i in range(8):
                a(f"v_mul_f32 v{t0}, v{sg}, v{ts+i}\nv_mul_f32 v{t1}, v{sg}, v{tc+i}")
                a(cvt(s.B1[T][i>>2][0]+(i&3), tc+i, t0, False, True)); a(cvt(s.B1[T][i>>2][1]+(i&3), ts+i, t1))
            a(f"v_mul_f32 v{step}, {fhex(1/32)}, v{step}")
            sincos(a, sf, step, 8, tc, ts, ta)
            for i in range(8): a(f"v_mul_f32 v{s.TWc[T][i>>2]+(i&3)}, s26, v{tc+i}\nv_mul_f32 v{s.TWs[T][i>>2]+(i&3)}, s26, v{ts+i}")
        dft_block(a, s.B2, lambda T: a(f"v_or_b32 v{step}, {16*T}, v{j}"), sf, tc, ts, ta, step, "SCN")
        a(f"v_and_b32 v{t1}, 1, v{g}\nv_cmp_eq_u32 vcc, 1, v{t1}\nv_lshrrev_b32 v{sg}, 1, v{g}\nv_lshl_or_b32 v{sg}, v{t1}, 1, v{sg}")
        for Tk in range(2):
            a(f"v_add_u32 v{t0}, {16*Tk}, v{j}\nv_sub_u32 v{step}, 32, v{t0}\nv_cndmask_b32 v{t0}, v{t0}, v{step}, vcc")
            a(f"v_bfe_u32 v{step}, v{t0}, 3, 1\nv_xor_b32 v{step}, v{step}, v{sg}\nv_lshlrev_b32 v{step}, 4, v{step}\nv_lshl_add_u32 v{ra+Tk}, v{t0}, 6, v{step}")
            a(f"v_bfe_u32 v{step}, v{t0}, 1, 2\nv_xor_b32 v{step}, s3, v{step}\nv_lshl_add_u32 v{ra+Tk}, v{step}, 2, v{ra+Tk}\nv_add_u32 v{ra+Tk}, {LB}, v{ra+Tk}")
        a(f"s_lshl_b32 s27, s3, 1\nv_and_b32 v{t0}, 7, v{j}\nv_xor_b32 v{t0}, s27, v{t0}\nv_lshlrev_b32 v{t0}, 4, v{t0}")
        a(f"v_lshl_add_u32 v{t0}, v{g}, 7, v{t0}\nv_lshl_add_u32 v{s.wa}, v{j}, 9, v{t0}\nv_add_u32 v{s.wa}, {LB}, v{s.wa}")
        a(f"v_lshrrev_b32 v{t0}, 5, v{l}\nv_and_b32 v{t1}, 7, v{l}\nv_xor_b32 v{t1}, v{t1}, v{t0}\nv_lshlrev_b32 v{s.sox}, 4, v{t1}")
        a(f"v_bfe_u32 v{t1}, v{l}, 3, 2\nv_lshl_add_u32 v{s.sox}, v{t1}, 8, v{s.sox}\nv_lshl_add_u32 v{s.sox}, v{t0}, 10, v{s.sox}")
        for n in range(1, 4): a(f"v_xor_b32 v{s.sox+n}, {32*n}, v{s.sox}")
        a("s_lshl_b32 s28, s20, 4\ns_lshr_b32 s29, s21, 1\ns_add_u32 s28, s28, s29\ns_lshl_b32 s28, s28, 15\ns_and_b32 s29, s21, 1\ns_lshl_b32 s29, s29, 7\ns_add_u32 s28, s28, s29")
        a("s_lshl_b32 s29, s3, 13\ns_add_u32 s28, s28, s29\ns_add_u32 s29, s28, 4096")
    def main(s, a, hook):
        HNL = 17408; XR, D, E, vo = s.XR, s.D, s.E, s.vo
        X = s.sf; tt = s.ta
        a("s_mov_b32 m0, s23")
        for n in range(4): a(f"buffer_load_dwordx4 v{vo}, s[12:15], s24 offen offset:{1024*n} sc1 lds")
        a(f"s_mov_b32 m0, {LB+16384}\ns_mov_b64 exec, 15\nbuffer_load_dwordx4 v{vo}, s[12:15], s25 offen sc1 lds\ns_mov_b64 exec, -1")
        nx = hook("p3a")
        srd(a, 12, 10, H_SIZE, H_OFF)
        a(f"v_add_u32 v{vo}, s23, v{vo}")
        for k in range(16): a(f"v_lshlrev_b32 v{E+2*k}, 16, v{XR+k}\nv_and_b32 v{E+2*k+1}, 0xffff0000, v{XR+k}")
        a(f"s_waitcnt vmcnt({nx})\ns_barrier")
        stamp(a, "p3ld")
        for Tk in range(2):
            for m in range(8): a(f"ds_read_b32 v{X+8*Tk+m}, v{s.ra+Tk} offset:{2048*m}")
        hook("p3b")
        D1 = lambda Tk, T1, part: D + ((Tk*2+T1)*2+part)*4
        for Tk in range(2):
            for t in range(2):
                a(f"s_waitcnt lgkmcnt({12-8*Tk-4*t})")
                for T1 in range(2):
                    for part in range(2): a(mfma(D1(Tk,T1,part), X+8*Tk+4*t, s.B1[T1][t][part], t == 0))
        D2 = lambda T1, T2, part: E + ((part*2+T2)*2+T1)*4
        for T1 in range(2):
            for Tk in range(2):
                re, im = D1(Tk,T1,0), D1(Tk,T1,1); o = X+4*(2*T1+Tk)
                a(twiddle(re, im, s.TWc[T1][Tk], s.TWs[T1][Tk], tt, inverse=True))
                a([cvt(o, re, re+1), cvt(o+1, re+2, re+3), cvt(o+2, im, im+1), cvt(o+3, im+2, im+3)])
            for Tk in range(2):
                for T2 in range(2):
                    for part in range(2): a(mfma(D2(T1,T2,part), X+4*(2*T1+Tk), s.B2[T2][Tk] + (2 if part == 0 else 0), False))
        hook("p3c")
        st = s.tc; rn = s.ts
        for k in range(16):
            e = k // 8; p = vr(E+2*k, 2); s_ = vr(st+4*e, 2); q_ = vr(st+4*e+2, 2)
            if k % 8 == 0: a(f"v_pk_mul_f32 {q_}, {p}, {p}")
            elif k % 8 == 1: a(f"v_pk_add_f32 {s_}, {p}, {vr(E+2*k-2,2)}\nv_pk_fma_f32 {q_}, {p}, {p}, {q_}")
            else: a(f"v_pk_add_f32 {s_}, {p}, {s_}\nv_pk_fma_f32 {q_}, {p}, {p}, {q_}")
        row_stats(a, st, st+2, st+4, st+6, rn, rn+2, tt)
        a(f"v_xor_b32 v{s.t0}, 16, v{s.wa}")
        for n in range(4):
            e, T2 = n >> 1, n & 1
            for k in range(4): a(cvt(XR+4*n+k, E+8*n+2*k, E+8*n+2*k+1))
            for k in range(4): a(norm(E+8*n+2*k, rn+2*e))
            for k in range(4): a(cvt(X+4*n+k, E+8*n+2*k, E+8*n+2*k+1))
            a(f"ds_write_b128 v{s.t0 if e else s.wa}, {vr(X+4*n,4)} offset:{HNL+8192*T2}")
        a("s_waitcnt lgkmcnt(0)\ns_barrier")
        for n in range(4): a(f"ds_read_b128 {vr(D+4*n,4)}, v{vo} offset:{HNL+1024*n}")
        for n in range(4): a(f"s_waitcnt lgkmcnt({3-n})\nbuffer_store_dwordx4 {vr(D+4*n,4)}, v{s.sox+n}, s[16:19], s{28+n//2} offen offset:{2048*(n&1)} sc1")
        for n in range(4): a(f"buffer_store_dwordx4 {vr(XR+4*n,4)}, v{s.xo}, s[12:15], s22 offen offset:{1024*n} sc1")
```

```python
import sys
from asmgen import *
import gen_row, gen_gemm
PFX = "sequential_preLN__spectral_gfnet__glu_gated_bilinear__prompt"
def build(path):
    n = PFX + "_kernel"
    t, nv, ao, lds = gen_gemm.gen_fused(n)
    ref = open("cdna_kernels/" + PFX + ".s.ref").read().split("\n")
    out = "\n".join(ref[:11]) + f"\n; @launch grid=(256,1,1) block=(256,1,1) lds={lds}\n"
    out += '.amdgcn_target "amdgcn-amd-amdhsa--gfx950"\n.text\n' + kernel_text(n, t) + 'code_end:\n.section .rodata,"a"\n'
    out += kernel_desc(n, nv, ao, 102 if STAMP["on"] else 64)
    if STAMP["on"]: out += "; stamps: " + " ".join(STAMP["sel"]) + " end\n"
    open(path, "w").write(out)
    print("vgpr", nv, "lds", lds, "lines", len(t.splitlines()), "nops", t.count("s_nop"))
if __name__ == "__main__":
    for o in list(sys.argv):
        if o.startswith("--var="):
            k, _, v = o[6:].partition(":"); gen_row.VAR[k] = (int(v) if v.isdigit() else v) if v else 1; sys.argv.remove(o)
    STAMP["sel"] = "start p1x p1end drain1 bar1 p2ld p2end drain2 bar2 p3ld p3end drain3 bar3 p4loop p4end drain4 bar4 p5loop".split()
    for o in list(sys.argv):
        if o.startswith("--sel="): STAMP["sel"] = o[6:].split(","); sys.argv.remove(o)
    if "--dbg" in sys.argv:
        STAMP["dbg"] = {0: list(enumerate([0, 1, 2, 4, 5, 6, 8, 9, 10, 12, 13, 14, 16, 17, 18]))}; sys.argv.remove("--dbg")
    if "--clk" in sys.argv: STAMP["clk"] = True; sys.argv.remove("--clk")
    if "--stamp" in sys.argv: STAMP["on"] = True; sys.argv.remove("--stamp")
    build(sys.argv[1] if len(sys.argv) > 1 else "cdna_kernels/" + PFX + ".s")
```

```python
from asmgen import *
from gen_row import *
WBYTES = 1024 * 7168

def sync(a, name, add_expr, poll_expr, nshard, vt, work, nfirst, after_add=None, st=None, drain=None, before_poll=None):
    w = Asm(); work(w); L = w.L
    while nfirst < len(L) and any(x.startswith(("s_cbranch", "s_branch")) and x.split()[1] + ":" in L[nfirst:] for x in L[:nfirst]): nfirst += 1
    while nfirst < len(L) and not (L[nfirst-1].startswith("v_") and L[nfirst].startswith("v_")): nfirst += 1
    a(L[:nfirst])
    if drain: drain(a)
    else: a("s_waitcnt vmcnt(0)")
    if st is not None: stamp(a, st)
    a(f"s_barrier\ns_cmp_lg_u32 s3, 0\ns_cbranch_scc1 {name}_skip1")
    a(f"{add_expr}s_lshl_b32 s63, s63, 8\ns_add_u32 s63, s63, {CNT_OFF}\nv_mov_b32 v{vt}, s63\nv_mov_b32 v{vt+1}, 1\ns_mov_b64 exec, 1")
    a(f"global_atomic_add v{vt}, v{vt+1}, s[10:11] sc1\ns_mov_b64 exec, -1\n{name}_skip1:")
    if after_add: after_add()
    a(L[nfirst:])
    if st: stamp(a, st.replace("drain", "work"))
    if before_poll: before_poll(a)
    a(f"s_cmp_lg_u32 s3, 0\ns_cbranch_scc1 {name}_skip2")
    a(f"{poll_expr}s_lshl_b32 s63, s63, 8\ns_add_u32 s63, s63, {CNT_OFF}\nv_mbcnt_lo_u32_b32 v{vt}, -1, 0\nv_lshl_add_u32 v{vt}, v{vt}, 8, s63\ns_mov_b32 s63, 0x40000\ns_mov_b64 exec, {(1 << nshard) - 1}\n{name}_poll:")
    a(f"global_load_dword v{vt+1}, v{vt}, s[10:11] sc1\ns_waitcnt vmcnt(0)\nv_cmp_ne_u32 vcc, {16 if nshard > 1 else 32}, v{vt+1}\ns_sub_u32 s63, s63, 1\ns_cbranch_scc1 {name}_done")
    a(f"s_cbranch_vccz {name}_done\ns_sleep 1\ns_branch {name}_poll\n{name}_done:\ns_mov_b64 exec, -1\n{name}_skip2:\ns_barrier")

def gen_fused(name, hooks=None):
    a = Asm()
    STG = 28672; TORD = [6, 0, 1, 2, 3, 4, 5]
    acc = lambda t, mat, m: ((t*2+mat)*4+m)*4
    P = Alloc(232)
    l, vA, vB, vX = P(), P(), P(), P()
    vD = P(7); t0, t1, t2 = P(), P(), P(); vP, vPd, vP2 = P(), P(), P(); vD5 = P(2); vS = P(2); vH = P()
    WR = lambda i: 4*(i % 4)
    XS = lambda ks, m: 16 + 16*(ks % 4) + 4*m
    a("s_load_dwordx2 s[4:5], s[0:1], 0\ns_load_dwordx2 s[10:11], s[0:1], 72\ns_load_dwordx2 s[52:53], s[0:1], 8\ns_load_dwordx2 s[54:55], s[0:1], 16")
    a("s_load_dwordx2 s[6:7], s[0:1], 32\ns_load_dwordx2 s[8:9], s[0:1], 40\ns_load_dwordx4 s[56:59], s[0:1], 48\ns_load_dwordx2 s[60:61], s[0:1], 64")
    if STAMP["on"]:
        for r in range(66, 102): a(f"s_mov_b32 s{r}, 0")
    stamp(a, "start")
    a(f"s_cmp_ge_u32 s2, 256\ns_cbranch_scc1 {name}_end")
    a(f"s_getpc_b64 s[12:13]\ns_and_b32 s12, s12, 0xffffff00\ns_lshr_b32 s14, s2, 3\ns_lshl_b32 s14, s14, 4\nv_add_lshl_u32 v4, v0, s14, 7\nv_cmp_gt_u32 vcc, code_end-{name}, v4\nv_cmp_gt_u32 s[14:15], 16, v0")
    a(f"s_and_b64 vcc, vcc, s[14:15]\ns_and_saveexec_b64 s[14:15], vcc\ns_cbranch_execz {name}_cpf\nglobal_load_dword a79, v4, s[12:13]\n{name}_cpf:\ns_mov_b64 exec, s[14:15]")
    a(f"v_lshrrev_b32 v{G_}, 6, v0\nv_and_b32 v{L_}, 63, v0\nv_readfirstlane_b32 s3, v{G_}\nv_and_b32 v{J_}, 15, v{L_}\nv_lshrrev_b32 v{G_}, 4, v{L_}")
    def touches(spec, vt):
        if not spec or spec == "-": return 0
        a(f"s_lshl_b32 s63, s2, 2\ns_add_u32 s63, s63, s3\ns_lshl_b32 s63, s63, 4\nv_add_lshl_u32 v{vt}, v{J_}, s63, 7\ns_mov_b32 s38, {WBYTES}\ns_mov_b32 s39, 0x20000")
        for w in spec.split("_"):
            p = {"G": 6, "U": 8, "D": 56}[w[0]]
            a(f"s_mov_b32 s36, s{p}\ns_mov_b32 s37, s{p+1}\ns_mov_b32 s63, {int(w[1]) << 21}\nbuffer_load_dword a79, v{vt}, s[36:39], s63 offen")
        return len(spec.split("_"))
    def st4(dst, pos):
        return (f"s_and_b32 s63, s{pos}, 3\ns_cmp_eq_u32 s63, s4\ns_cselect_b32 s63, 4, 0\ns_add_u32 s{dst}, s{pos}, s63\ns_and_b32 s{dst}, s{dst}, 15\n")
    def dma4(buf_expr, vD=vD, sr4=44):
        o = []
        for i in range(7):
            pre = ""
            if i == 0: pre = f"{st4(51, 5)}s_mul_i32 s51, s51, 458752\ns_add_u32 s5, s5, 1\n{buf_expr}s_mov_b32 m0, s52\n"
            if i == 4: pre = "s_add_u32 s52, s52, 4096\ns_mov_b32 m0, s52\n"
            post = ""
            o.append((pre, f"buffer_load_dwordx4 v{vD+i}, s[{sr4}:{sr4+3}], s51 offen offset:{1024*(i&3)} {VAR.get('wfl', '').replace('_', ' ')} lds{post}"))
        return o
    wsrd = lambda d: f"s_cmp_lt_u32 s3, 2\ns_cselect_b32 s{d}, s6, s8\ns_cselect_b32 s{d+1}, s7, s9\ns_mov_b32 s{d+2}, {WBYTES}\ns_mov_b32 s{d+3}, 0x20000"
    def hook2(where):
        n = touches(VAR.get("t" + where[1:], "-"), p2.t0)
        if where == VAR.get("d0at", "p2b"):
            a(wsrd(36))
            for i in range(7): a(f"v_accvgpr_read_b32 v{p2.E+i}, a{16+i}")
            for p, q in dma4("s_mov_b32 s52, s50\n", p2.E, 36): a(p + q)
            n += 7
        return n
    def hook3(where):
        n = 0
        if where == VAR.get("d0at", "p2b"):
            for p, q in dma4("s_mov_b32 s52, s50\n"): a(p + q)
            n += 7
        if where == VAR.get("d1at", "p3b"):
            for p, q in dma4(f"s_add_u32 s52, s50, {STG}\n"): a(p + q)
            n += 7
        return n
    def addr4(a, vD, t0, t1, t2, l):
        a("s_and_b32 s48, s2, 7\ns_lshl_b32 s48, s48, 2\ns_bfe_u32 s49, s2, 0x20003\ns_add_u32 s48, s48, s49\ns_lshr_b32 s49, s2, 5")
        a("s_and_b32 s40, s3, 1\ns_mul_i32 s40, s40, 229376\ns_mul_i32 s41, s48, 224\ns_add_u32 s40, s40, s41\ns_movk_i32 s41, 4682\ns_movk_i32 s42, 7168")
        for i in range(7):
            a(f"v_add_u32 v{t0}, {64*i}, v{l}\nv_mul_u32_u24 v{t1}, s41, v{t0}\nv_lshrrev_b32 v{t1}, 16, v{t1}")
            a(f"v_mul_u32_u24 v{t2}, 14, v{t1}\nv_sub_u32 v{t0}, v{t0}, v{t2}")
            a(f"v_bfe_u32 v{t2}, v{t1}, 2, 1\nv_bfe_u32 v{vD+i}, v{t1}, 3, 1\nv_xor_b32 v{t2}, v{t2}, v{vD+i}\nv_mul_u32_u24 v{t2}, 12, v{t2}\nv_xor_b32 v{t1}, v{t1}, v{t2}")
            a(f"v_mul_u32_u24 v{t1}, s42, v{t1}\nv_lshl_add_u32 v{t1}, v{t0}, 4, v{t1}\nv_add_u32 v{vD+i}, s40, v{t1}")
            if i & 3: a(f"v_subrev_u32 v{vD+i}, {1024*(i&3)}, v{vD+i}")
            a(f"v_accvgpr_write_b32 a{16+i}, v{vD+i}")
        a("s_add_u32 s4, s48, s49\ns_and_b32 s4, s4, 3\ns_mov_b32 s5, 0" if VAR.get("skew4", 0) else "s_mov_b32 s4, 7\ns_mov_b32 s5, 0")
        a(f"s_mul_i32 s50, s3, 7168\n")
    p2 = P2(name + "_p2"); p3 = P3(name + "_p3"); p1 = P1(name + "_p1", p2)
    p1.main(a)
    stamp(a, "p1end")
    def pre2(w): p2.pre(w); addr4(w, p2.E, p2.E+8, p2.E+9, p2.E+10, L_)
    sync(a, name + "_s1", "s_and_b32 s63, s2, 15\n", "s_mov_b32 s63, 0\n", 16, p2.D, pre2, VAR.get("n1", 130), lambda: touches(VAR.get("t1", "-"), p2.D + 2), "drain1", p1.drain)
    stamp(a, "bar1")
    p2.main(a, hook2)
    stamp(a, "p2end")
    def pre3(w):
        p3.xloads(w); p3.pre(w); w(f"v_and_b32 v{l}, 63, v0"); w(wsrd(44))
        for i in range(7): w(f"v_accvgpr_read_b32 v{vD+i}, a{16+i}")
    sync(a, name + "_s2", "s_and_b32 s63, s2, 15\ns_add_u32 s63, s63, 16\n", "s_mov_b32 s63, 16\n", 16, p3.D, pre3, VAR.get("n2", 130), lambda: touches(VAR.get("t2", "-"), p3.D + 2), "drain2")
    stamp(a, "bar2")
    p3.main(a, hook3)
    stamp(a, "p3end")
    def setup4(a):
        a(f"v_lshlrev_b32 v{vX}, 4, v{l}")
        a("s_lshl_b32 s28, s49, 4\ns_lshl_b32 s29, s3, 2\ns_add_u32 s28, s28, s29")
        a("s_lshl_b32 s43, s28, 15\ns_mov_b32 s31, 0")
        srd(a, 16, 10, HN_SIZE, HN_OFF)
        a(f"s_lshr_b32 s24, s2, 3\ns_lshl_b32 s24, s24, 1\ns_and_b32 s22, s3, 1\ns_add_u32 s24, s24, s22\ns_mul_i32 s24, s24, 14336\ns_and_b32 s22, s2, 7\ns_mul_i32 s22, s22, 896\ns_add_u32 s24, s24, s22")
        a(f"v_and_b32 v{t0}, 7, v{l}\nv_min_u32 v{t1}, 6, v{t0}\nv_bfe_u32 v{t2}, v{l}, 3, 1\nv_mul_u32_u24 v{t2}, 7168, v{t2}\nv_lshl_add_u32 v{t2}, v{t1}, 7, v{t2}\nv_add_u32 v{vP}, s24, v{t2}")
        a(f"s_lshl_b32 s24, s2, 2\ns_add_u32 s24, s24, s3\ns_lshl_b32 s24, s24, 3\nv_add_lshl_u32 v{vP2}, v{t0}, s24, 7\ns_mov_b32 s20, s56\ns_mov_b32 s21, s57\ns_mov_b32 s22, {WBYTES}\ns_mov_b32 s23, 0x20000")
        a(f"s_mov_b32 s24, 0\ns_mov_b32 s38, {VAR.get('ahead', 2) * 917504}")
        a(f"v_lshrrev_b32 v{t0}, 5, v{l}\nv_lshlrev_b32 v{t0}, 4, v{t0}\nv_bfe_u32 v{t1}, v{l}, 4, 1\nv_lshl_add_u32 v{t0}, v{t1}, 2, v{t0}\nv_bfe_u32 v{t1}, v{l}, 2, 2\nv_add_u32 v{t0}, v{t0}, v{t1}")
        a(f"v_mul_u32_u24 v{t0}, 224, v{t0}\nv_and_b32 v{t1}, 3, v{l}\nv_lshl_add_u32 v{t0}, v{t1}, 3, v{t0}")
        a(f"s_and_b32 s36, s48, 1\ns_lshl_b32 s37, s36, 5\nv_add_u32 v{vA}, s37, v{t0}\ns_cmp_eq_u32 s36, 0\ns_cselect_b32 s37, 192, 0\nv_add_u32 v{vB}, s37, v{t0}")
        a(f"v_bfe_u32 v{t0}, v{l}, 4, 1\nv_lshrrev_b32 v{t1}, 5, v{l}\nv_and_b32 v{t2}, 15, v{l}\nv_lshlrev_b32 v{t2}, 4, v{t2}\nv_lshl_add_u32 v{t2}, v{t1}, 8, v{t2}")
        a(f"v_lshl_add_u32 v{vS}, v{t0}, 9, v{t2}\nv_mul_u32_u24 v{t0}, 114688, v{t0}\nv_add_u32 v{vS+1}, v{t0}, v{t2}")
        a("s_lshr_b32 s37, s48, 1\ns_mul_i32 s37, s37, 7\ns_add_u32 s41, s37, 3\ns_lshl_b32 s42, s36, 2\ns_add_u32 s37, s37, s42\ns_lshl_b32 s37, s37, 10\ns_lshl_b32 s41, s41, 10\ns_lshl_b32 s42, s36, 9\ns_add_u32 s41, s41, s42")
        a("s_mul_i32 s28, s28, 114688\ns_add_u32 s37, s37, s28\ns_add_u32 s41, s41, s28\ns_add_u32 s42, s41, 229376")
        a("s_add_u32 s28, s37, 114688\ns_add_u32 s29, s37, 229376\ns_add_u32 s30, s37, 344064")
        a("s_bfe_u32 s25, s2, 0x20001\ns_lshl_b32 s25, s25, 2\ns_lshr_b32 s60, s2, 6\ns_add_u32 s25, s25, s60")
        a("s_and_b32 s27, s2, 1\ns_lshl_b32 s27, s27, 3\ns_bfe_u32 s61, s2, 0x30003\ns_add_u32 s27, s27, s61\ns_lshl_b32 s27, s27, 7")
        a("s_add_u32 s60, s60, s61\ns_and_b32 s60, s60, 3\ns_lshl_b32 s61, s3, 12\ns_mov_b32 s53, 0")
        a(f"v_lshrrev_b32 v{t0}, 3, v{l}\nv_and_b32 v{t1}, 2, v{t0}\nv_and_b32 v{t2}, 7, v{l}\nv_xor_b32 v{t2}, v{t2}, v{t1}\nv_lshlrev_b32 v{t2}, 4, v{t2}\nv_lshl_add_u32 v{t2}, v{t0}, 11, v{t2}")
        a(f"s_lshl_b32 s26, s3, 16\ns_add_u32 s26, s26, s27\nv_add_u32 v{vD5}, s26, v{t2}\nv_xor_b32 v{vD5+1}, 64, v{vD5}")
        srd(a, 12, 56, 3584 * 2048)
        for r in range(224): a(f"v_mov_b32 v{r}, 0")
    sync(a, name + "_a", "s_and_b32 s63, s2, 7\ns_add_u32 s63, s63, 32\n", "s_add_u32 s63, s49, 32\n", 1, 224, setup4, VAR.get("n3", 130), None, "drain3")
    stamp(a, "bar3")
    fl = "sc1"
    def xload(ks):
        o = [("", f"buffer_load_dwordx4 {ar(XS(ks,m),4)}, v{vX}, s[16:19], s{32+m} offen offset:{1024*(ks&1)} {fl}") for m in range(4)]
        if not ks & 1: o[0] = (st4(32, 31) + "s_lshl_b32 s32, s32, 11\ns_add_u32 s32, s32, s43\ns_add_u32 s33, s32, 0x8000\ns_add_u32 s34, s32, 0x10000\ns_add_u32 s35, s32, 0x18000\ns_add_u32 s31, s31, 1\n", o[0][1])
        return o
    flat = lambda o: [p + q for p, q in o]
    dummy = f"buffer_load_dword v{vPd}, v{vX}, s[20:23], s22 offen"
    a(flat(xload(0))); a(flat(xload(1))); a([dummy] * 7); a(flat(xload(2)))
    def frag(ks, t, mat, ring):
        off = (ks >> 1) * STG + mat * 14336 + (ks & 1) * 7168 + (32 * t if t < 6 else 0)
        return [f"ds_read_b64_tr_b16 {ar(WR(ring)+2*h,2)}, v{vB if t == 6 else vA} offset:{off+1792*h}" for h in range(2)]
    def wread(idx): return frag((idx // 14) % 4, TORD[(idx % 14) >> 1], idx & 1, idx)
    def mms(ks, t, mat, ring):
        mm = [f"{MF} {vr(acc(t,mat,m),4)}, {ar(WR(ring),4)}, {ar(XS(ks,m),4)}, {vr(acc(t,mat,m),4)}" for m in range(4)]
        return mm[::-1] if ring & 1 else mm
    for i in range(3): a(wread(i))
    touch = (f"buffer_load_dword v{vPd}, v{vP}, s[44:47], s38 offen\nbuffer_load_dword v{vPd}, v{vP2}, s[20:23], s24 offen\ns_add_u32 s38, s38, 917504\ns_add_u32 s24, s24, 0x100000")
    if VAR.get("nogu"): touch = touch.replace("s[44:47], s38", "s[20:23], s22")
    a(f"s_mov_b32 s39, 0\ns_mov_b32 s40, {2*STG}\n{name}_loop4:")
    for ks in range(4):
        extra = xload(ks+3)
        if ks == 0: extra += dma4("s_add_u32 s52, s50, s40\n")
        if ks == 2: extra += dma4(f"s_add_u32 s52, s50, s40\ns_add_u32 s52, s52, {STG}\ns_xor_b32 s40, s40, {2*STG}\n")
        if ks == 1: extra.append(("", touch))
        for n in range(14):
            idx = ks*14 + n
            a(f"s_waitcnt vmcnt({[15, 22, 17, 24][ks]}) lgkmcnt(4)" if n == 0 else "s_waitcnt lgkmcnt(4)")
            mm = mms(ks, TORD[n >> 1], n & 1, idx); rd = wread(idx+3)
            a(mm[0])
            if n == 11 and ks & 1:
                a("s_waitcnt vmcnt(19)\ns_barrier")
                if ks == 3: a(f"v_xor_b32 v{vA}, {2*STG}, v{vA}\nv_xor_b32 v{vB}, {2*STG}, v{vB}")
            a(rd[0]); a(mm[1]); a(rd[1])
            e = extra.pop(0) if extra else None
            if e: a(e[0])
            a(mm[2])
            if e: a(e[1])
            if idx == 55: a("s_add_u32 s39, s39, 1\ns_cmp_lg_u32 s39, 7")
            a(mm[3])
        assert not extra
    a(f"s_cbranch_scc1 {name}_loop4")
    stamp(a, "p4loop")
    def stage_of(dst, pos):
        return (f"s_and_b32 s63, s{pos}, 3\ns_cmp_eq_u32 s63, s60\ns_cselect_b32 s63, 4, 0\ns_add_u32 s{dst}, s{pos}, s63\n"
                f"s_cmp_ge_u32 s{dst}, 28\ns_cselect_b32 s63, 28, 0\ns_sub_u32 s{dst}, s{dst}, s63\ns_cmp_ge_u32 s{pos}, 28\ns_cselect_b32 s{dst}, 28, s{dst}\n")
    def dma5(i):
        pre = (stage_of(54, 53) + "s_lshl_b32 s54, s54, 18\ns_and_b32 s55, s53, 3\ns_lshl_b32 s55, s55, 14\ns_add_u32 s55, s55, s61\ns_add_u32 s53, s53, 1\n") if i == 0 else "s_add_u32 s54, s54, 16384\ns_add_u32 s55, s55, 1024\n"
        return pre + f"s_mov_b32 m0, s55\nbuffer_load_dwordx4 v{vD5+(i&1)}, s[12:15], s54 offen lds"
    seq = [(6, k) for k in range(3)] + [(0, k) for k in range(3)] + [(6, 3), (0, 3)] + [(t, k) for t in range(1, 6) for k in range(4)]
    seq = [(t, k, mat) for t, k in seq for mat in range(2)]
    vm = ["X0"] * 4 + ["T"] * 2 + ["X1"] * 4 + ["D"] * 7 + ["X2"] * 4
    def vwait(tag): return len(vm) - 1 - max(i for i, x in enumerate(vm) if x == tag)
    a(flat(xload(3))); vm += ["X3"] * 4
    srd(a, 16, 10, HH_SIZE, HH_OFF)
    a(frag(seq[2][1], seq[2][0], seq[2][2], 2))
    def product(t):
        o = []
        for m in range(4):
            g_, u_ = acc(t,0,m), acc(t,1,m)
            o += [f"v_mul_f32 v{g_+r}, v{g_+r}, v{u_+r}" for r in range(4)]
            d = (acc(t & ~1, 1, m) + 2*(t & 1)) if t < 6 else (acc(6, 1, m & ~1) + 2*(m & 1))
            if t < 6 and not t & 1 or t == 6 and not m & 1: o += [cvt(g_, g_, g_+1), cvt(g_+1, g_+2, g_+3)]
            else:
                p = acc(t-1, 0, m) if t < 6 else acc(6, 0, m-1)
                o += [cvt(p+2, g_, g_+1), cvt(p+3, g_+2, g_+3), f"v_permlane16_swap_b32 v{p}, v{p+2}", f"v_permlane16_swap_b32 v{p+1}, v{p+3}"]
                if t < 6: o.append(f"buffer_store_dwordx4 {vr(p,4)}, v{vS}, s[16:19], s{[37,28,29,30][m]} offen offset:{1024*(t>>1)} sc1")
                else: o.append(f"buffer_store_dwordx4 {vr(p,4)}, v{vS+1}, s[16:19], s{41+(m>>1)} offen sc1")
        return o
    fill = []; seen = set(); outstanding = 4 + 2 + 2
    for i, (t, k, mat) in enumerate(seq):
        lg = 4 if i + 2 < len(seq) else 2 * (len(seq) - 1 - i)
        w = f"s_waitcnt lgkmcnt({lg})"
        if k not in seen: seen.add(k); w = f"s_waitcnt vmcnt({vwait('X'+str(k))}) lgkmcnt({lg})"
        a(w)
        mm = mms(k, t, mat, i)
        rd = frag(seq[i+3][1], seq[i+3][0], seq[i+3][2], i+3) if i + 3 < len(seq) else ["", ""]
        a(mm[0])
        if i == 1:
            a(f"s_waitcnt vmcnt({vwait('D')})\ns_barrier")
            fill += [dma5(q % 4) for q in range(8)]
        def put(n):
            for _ in range(n):
                if fill:
                    x = fill.pop(0); a(x)
                    if "buffer_" in x: vm.append("o")
        a(rd[0]); a(mm[1]); a(rd[1]); put(1); a(mm[2]); put(2); a(mm[3])
        if i + 1 < len(seq): put(1)
        if k == 3 and mat == 1:
            if i + 1 < len(seq): fill += ["s_nop 0"] * 2
            fill += product(t)
    a(fill)
    stamp(a, "p4end")
    V = Alloc(0, 232)
    ACC = V(32); acc5 = lambda n, m: ACC + (m*4+n)*4
    HS = V(64); XS5 = lambda ks, m: HS + 8*(ks % 8) + 4*m
    WF = V(32); WR5 = lambda i: WF + 4*(i % 8)
    HR = V(16); HF = V(32); vO = V(2); vA5 = V(4)
    def setup5(a):
        a("s_lshl_b32 s28, s25, 3\ns_lshl_b32 s29, s3, 1\ns_add_u32 s28, s28, s29\ns_mul_i32 s29, s28, 114688")
        for m in range(2):
            a(f"s_add_u32 s31, s28, {m}\ns_lshr_b32 s32, s31, 4\ns_lshl_b32 s32, s32, 8\ns_and_b32 s31, s31, 15\ns_lshl_b32 s31, s31, 2\ns_add_u32 s31, s31, s32")
            a(f"v_bfe_u32 v{t2}, v{l}, 3, 1\nv_lshlrev_b32 v{t2}, 1, v{t2}\nv_bfe_u32 v{vH}, v{l}, 1, 2\nv_lshl_add_u32 v{t2}, v{vH}, 6, v{t2}\nv_and_or_b32 v{t2}, v{l}, 1, v{t2}\nv_add_u32 v{t2}, s31, v{t2}")
            a(f"v_lshlrev_b32 v{vO+m}, 11, v{t2}\nv_bfe_u32 v{t2}, v{l}, 4, 1\nv_lshl_add_u32 v{vO+m}, v{t2}, 5, v{vO+m}\nv_lshrrev_b32 v{t2}, 5, v{l}\nv_lshl_add_u32 v{vO+m}, v{t2}, 4, v{vO+m}")
        srd(a, 44, 10, H_SIZE, H_OFF)
        a(f"v_lshrrev_b32 v{t2}, 4, v{l}\nv_lshlrev_b32 v{vA5}, 10, v{t2}\nv_and_b32 v{t2}, 1, v{t2}\nv_lshl_add_u32 v{vA5}, v{t2}, 6, v{vA5}\nv_bfe_u32 v{t2}, v{l}, 2, 2\nv_lshl_add_u32 v{vA5}, v{t2}, 7, v{vA5}")
        a(f"v_lshrrev_b32 v{t2}, 1, v{t2}\nv_lshl_add_u32 v{vA5}, v{t2}, 5, v{vA5}\nv_and_b32 v{t2}, 3, v{l}\nv_lshl_add_u32 v{vA5}, v{t2}, 3, v{vA5}")
        for n in range(1, 4): a(f"v_xor_b32 v{vA5+n}, {32*n}, v{vA5}")
        for r in range(32): a(f"v_mov_b32 v{ACC+r}, 0")
        a("s_mov_b32 s36, 0")
    sync(a, name + "_b", "s_add_u32 s63, s49, 40\n", "s_lshr_b32 s63, s25, 1\ns_add_u32 s63, s63, 40\n", 1, 224, setup5, 200, None, "drain4")
    stamp(a, "bar4")
    def xload5(ks):
        pre = (stage_of(37, 36) + "s_lshl_b32 s37, s37, 12\ns_add_u32 s37, s37, s29\ns_add_u32 s38, s37, 114688\ns_add_u32 s36, s36, 1\n") if ks % 4 == 0 else ""
        return pre + "\n".join(f"buffer_load_dwordx4 {vr(XS5(ks,m),4)}, v{vX}, s[16:19], s{37+m} offen offset:{1024*(ks%4)} sc1" for m in range(2))
    hl = [f"buffer_load_dwordx4 {vr(HR+8*m+4*p,4)}, v{vO+m}, s[44:47], s27 offen offset:{64*p} sc1" for m in range(2) for p in range(2)]
    for k in range(7): a(xload5(k)); a(dma5(0) if k == 6 else hl[k-2] if k >= 2 else dummy)
    def wread5(idx):
        ks, n = (idx // 4) % 8, idx % 4
        return [f"ds_read_b64_tr_b16 {vr(WR5(idx)+2*h,2)}, v{vA5+n} offset:{4096*ks+512*h}" for h in range(2)]
    LA = 6
    for i in range(LA): a(wread5(i))
    a(f"s_mov_b32 s39, 14\n{name}_loop5:")
    for ks in range(8):
        for n in range(4):
            idx = ks*4 + n
            a(f"s_waitcnt vmcnt(19) lgkmcnt({2*LA-2})" if n == 0 else f"s_waitcnt lgkmcnt({2*LA-2})")
            mm = [f"{MF} {vr(acc5(n,m),4)}, {vr(WR5(idx),4)}, {vr(XS5(ks,m),4)}, {vr(acc5(n,m),4)}" for m in range(2)]
            if n & 1: mm.reverse()
            rd = wread5(idx+LA)
            a(mm[0])
            if (idx + LA) % 16 == 0:
                a("s_waitcnt vmcnt(12)\ns_barrier")
                if idx + LA == 32:
                    for q in range(4): a(f"v_xor_b32 v{vA5+q}, 32768, v{vA5+q}")
            a(rd[0]); a(mm[1]); a(rd[1])
            if n == 0: a(xload5(ks+7))
            if n == 1: a(dma5((ks+1) % 4))
            if idx == 31: a("s_sub_u32 s39, s39, 1\ns_cmp_lg_u32 s39, 0")
    a(f"s_cbranch_scc1 {name}_loop5")
    stamp(a, "p5loop")
    srd(a, 12, 58, 2048 * 2048)
    for k in range(16): a(f"v_lshlrev_b32 v{HF+2*k}, 16, v{HR+k}\nv_and_b32 v{HF+2*k+1}, 0xffff0000, v{HR+k}")
    for m in range(2):
        for p in range(2):
            b = acc5(2*p, m); h = HF + 16*m + 8*p
            for r in range(4): a(f"v_permlane16_swap_b32 v{b+r}, v{b+4+r}")
            for k in range(4): a(f"v_pk_add_f32 {vr(b+2*k,2)}, {vr(b+2*k,2)}, {vr(h+2*k,2)}")
            for k in range(4): a(cvt(h+k, b+2*k, b+2*k+1))
            a(f"buffer_store_dwordx4 {vr(h,4)}, v{vO+m}, s[12:15], s27 offen offset:{64*p}")
    stamp_flush(a, 0, 18, HS)
    a(f"s_waitcnt vmcnt(0)\n{name}_end:\ns_endpgm")
    return a.finish(), 256 + 80, 256, 163840
```

```python
from asmgen import *

Z1_OFF, Z1_SIZE = 0x0000000, 256 * 16384
WT_OFF, WT_SIZE = 0x0500000, 513 * 8192
Z2_OFF, Z2_SIZE = 0x0A00000, 256 * 16384
import os
_AL = os.environ.get('ALIAS', '00')
H_OFF, H_SIZE = WT_OFF if _AL[0] == '1' else 0x0F00000, 2048 * 2048
HN_OFF, HN_SIZE = Z1_OFF if _AL[1] == '1' else 0x1400000, 2048 * 2048
HH_OFF, HH_SIZE = 0x1900000, 2048 * 3584 * 2
CNT_OFF = 0x2800000
XL = 57344
LB = 114688
MF = "v_mfma_f32_16x16x32_bf16"
VAR = {}

def mfma(d, a, b, first): return f"{MF} {vr(d,4)}, {vr(a,4)}, {vr(b,4)}, {'0' if first else vr(d,4)}"
def cvt(d, a, b, na=False, nb=False): return f"v_cvt_pk_bf16_f32 v{d}, {'-' if na else ''}v{a}, {'-' if nb else ''}v{b}"
L_, J_, G_ = 1, 2, 3

def sincos(a, idxf, step, n, tc, ts, ta):
    for i in range(n): a(f"v_mul_f32 v{ta+i}, v{idxf+i}, v{step}")
    for i in range(n): a(f"v_cos_f32 v{tc+i}, v{ta+i}")
    for i in range(n): a(f"v_sin_f32 v{ts+i}, v{ta+i}")

def twiddle(re, im, c, s, t, inverse=False):
    o = []
    for h in (0, 2): o.append(f"v_pk_mul_f32 {vr(t+h,2)}, {vr(re+h,2)}, {vr(s+h,2)}")
    for h in (0, 2): o.append(f"v_pk_mul_f32 {vr(re+h,2)}, {vr(re+h,2)}, {vr(c+h,2)}")
    for h in (0, 2):
        o.append(f"v_pk_fma_f32 {vr(re+h,2)}, {vr(im+h,2)}, {vr(s+h,2)}, {vr(re+h,2)}" + (" neg_lo:[1,0,0] neg_hi:[1,0,0]" if inverse else ""))
    for h in (0, 2):
        o.append(f"v_pk_fma_f32 {vr(im+h,2)}, {vr(im+h,2)}, {vr(c+h,2)}, {vr(t+h,2)}" + ("" if inverse else " neg_lo:[0,0,1] neg_hi:[0,0,1]"))
    return o

def row_stats(a, sa, qa, sb, qb, ra, rb, t):
    for r in (sa, qa, sb, qb): a(f"v_add_f32 v{r}, v{r}, v{r+1}")
    a(f"v_permlane16_swap_b32 v{sa}, v{qa}\nv_permlane16_swap_b32 v{sb}, v{qb}")
    a(f"v_add_f32 v{sa}, v{sa}, v{qa}\nv_add_f32 v{sb}, v{sb}, v{qb}")
    a(f"v_permlane32_swap_b32 v{sa}, v{sb}")
    a(f"v_add_f32 v{sa}, v{sa}, v{sb}")
    for k in (8, 4, 2, 1): a(f"v_add_f32 v{sa}, v{sa}, v{sa} row_ror:{k}")
    a(f"v_mul_f32 v{sa}, {fhex(1/1024)}, v{sa}")
    a(f"v_readlane_b32 s40, v{sa}, 0\nv_readlane_b32 s41, v{sa}, 16\nv_readlane_b32 s42, v{sa}, 32\nv_readlane_b32 s43, v{sa}, 48")
    a(f"v_mov_b32 v{t}, s41\nv_mov_b32 v{t+1}, s43")
    a(f"v_fma_f32 v{t}, -s40, s40, v{t}\nv_fma_f32 v{t+1}, -s42, s42, v{t+1}")
    a(f"v_max_f32 v{t}, 0, v{t}\nv_max_f32 v{t+1}, 0, v{t+1}")
    a(f"v_add_f32 v{t}, {fhex(1e-5)}, v{t}\nv_add_f32 v{t+1}, {fhex(1e-5)}, v{t+1}")
    a(f"v_rsq_f32 v{ra}, v{t}\nv_rsq_f32 v{rb}, v{t+1}")
    a(f"v_mul_f32 v{ra+1}, s40, v{ra}\nv_mul_f32 v{rb+1}, s42, v{rb}")

def norm(p, r): return f"v_pk_fma_f32 {vr(p,2)}, {vr(p,2)}, {vr(r,2)}, {vr(r,2)} op_sel:[0,0,1] op_sel_hi:[1,0,1] neg_lo:[0,0,1] neg_hi:[0,0,1]"
ROWPAIR = "s_and_b32 s20, s2, 7\ns_lshr_b32 s21, s2, 3\ns_lshl_b32 s22, s20, 7\ns_lshl_b32 s23, s3, 5\ns_add_u32 s22, s22, s23\ns_add_u32 s22, s22, s21\ns_lshl_b32 s22, s22, 12"

def dft_block(a, B, colf, slotf, tc, ts, ta, step, order):
    for T in range(2):
        colf(T)
        a(f"v_cvt_f32_u32 v{step}, v{step}\nv_mul_f32 v{step}, {fhex(1/32)}, v{step}")
        sincos(a, slotf, step, 8, tc, ts, ta)
        for t in range(2):
            for x, w in enumerate(order):
                src = tc if w == "C" else ts
                for k in range(2): a(cvt(B[T][t]+2*x+k, src+4*t+2*k, src+4*t+2*k+1, w == "N", w == "N"))

class P1:
    def __init__(s, name, p2):
        s.name = name; s.W = p2.E; U = Alloc(p2.D + 4, p2.E)
        s.O = U(16); s.ad = U(2); s.vo = U(); s.kp = U(); s.jj = U(); s.jt = U(); s.WS = U(); s.so2 = U(); s.t0 = U(); s.t1 = U()
        s.lim = p2.D; s.tt = p2.ra
    def main(s, a):
        name = s.name; l, j, g = L_, J_, G_; V = Alloc(4, s.lim)
        W, vo, kp, jj, jt, ad, WS, so2, t0, t1, tt = s.W, s.vo, s.kp, s.jj, s.jt, s.ad, s.WS, s.so2, s.t0, s.t1, s.tt
        NT = VAR.get('nt', 'nt').replace('-', '')
        a(ROWPAIR)
        voff = V(); xa = V(); X = V(16); P = V(32); zt = V(2)
        a(f"v_lshlrev_b32 v{voff}, 4, v{l}\ns_lshl_b32 s23, s3, 12\ns_add_u32 s23, s23, {XL}\ns_mov_b32 m0, s23")
        a("s_waitcnt lgkmcnt(0)")
        srd(a, 12, 4, 2048 * 2048)
        for n in range(4): a(f"buffer_load_dwordx4 v{voff}, s[12:15], s22 offen offset:{1024*n} {NT} lds")
        a(f"s_or_b32 s24, s2, s3\ns_cbranch_scc1 {name}_nz\nv_lshlrev_b32 v{zt}, 8, v{l}\nv_add_u32 v{zt}, {CNT_OFF}, v{zt}\nv_mov_b32 v{zt+1}, 0\nglobal_store_dword v{zt}, v{zt+1}, s[10:11] sc1\n{name}_nz:")
        a("s_bfe_u32 s26, s2, 0x30003\ns_lshr_b32 s25, s2, 6\ns_lshl_b32 s28, s26, 2\ns_lshl_b32 s29, s20, 7\ns_add_u32 s28, s28, s29\ns_and_b32 s29, s3, 1\ns_lshl_b32 s29, s29, 6\ns_add_u32 s28, s28, s29\ns_mul_i32 s28, s28, 1026")
        a("s_lshl_b32 s29, s25, 8\ns_add_u32 s28, s28, s29")
        a(f"v_and_b32 v{jj}, 3, v{l}\nv_mul_u32_u24 v{vo}, 1026, v{jj}\nv_and_b32 v{kp}, 60, v{l}\nv_lshl_add_u32 v{vo}, v{kp}, 1, v{vo}\nv_add_u32 v{vo}, s28, v{vo}")
        srd(a, 44, 52, 2048 * 1026); srd(a, 48, 54, 2048 * 1026)
        for q in range(4): a(f"s_mov_b32 s{32+q}, {(32*(q>>1)+1024*(q&1))*1026}")
        wl = [f"buffer_load_dwordx2 {vr(W+16*kh+4*q+2*arr,2)}, v{vo}, s[{44+4*arr}:{47+4*arr}], s{32+q} offen offset:{128*kh} {NT}" for q in range(4) for arr in range(2) for kh in range(2)]
        NW0 = VAR.get("nw0", 6)
        if NW0:
            a(f"s_barrier\ns_cmp_lt_u32 s3, 2\ns_cbranch_scc1 {name}_w0"); a(wl[:NW0]); a(f"{name}_w0:")
        stamp(a, "p1ld")
        sf = V(8); ta = V(8); tc = V(8); ts = V(8); step = V()
        C1 = [V(4) for _ in range(2)]; S1 = [V(4) for _ in range(2)]; N1 = [V(4) for _ in range(2)]
        C2 = [V(4) for _ in range(2)]; S2 = [V(4) for _ in range(2)]; X2 = [V(4) for _ in range(2)]
        TWc = [[V(4) for _ in range(2)] for _ in range(2)]; TWs = [[V(4) for _ in range(2)] for _ in range(2)]
        a(f"v_lshlrev_b32 v{step}, 2, v{g}\nv_cvt_f32_u32 v{sf}, v{step}")
        for i in range(1, 4): a(f"v_add_f32 v{sf+i}, 1.0, v{sf+i-1}")
        for i in range(4): a(f"v_add_f32 v{sf+4+i}, {fhex(16.0)}, v{sf+i}")
        for T in range(2):
            a(f"v_lshrrev_b32 v{step}, 2, v{j}\nv_lshlrev_b32 v{step}, 3, v{step}\nv_and_or_b32 v{step}, v{j}, 3, v{step}")
            if T: a(f"v_or_b32 v{step}, 4, v{step}")
            a(f"v_cvt_f32_u32 v{step}, v{step}\nv_mul_f32 v{step}, {fhex(1/32)}, v{step}")
            sincos(a, sf, step, 8, tc, ts, ta)
            for k in range(4):
                a(cvt(C1[T]+k, tc+2*k, tc+2*k+1)); a(cvt(S1[T]+k, ts+2*k, ts+2*k+1)); a(cvt(N1[T]+k, ts+2*k, ts+2*k+1, True, True))
            for i in range(8): a(f"v_mul_f32 v{ta+i}, {fhex(1/32)}, v{ta+i}")
            for i in range(8): a(f"v_cos_f32 v{TWc[T][i>>2]+(i&3)}, v{ta+i}\nv_sin_f32 v{TWs[T][i>>2]+(i&3)}, v{ta+i}")
        for T in range(2):
            a(f"v_or_b32 v{step}, {16*T}, v{j}\nv_cvt_f32_u32 v{step}, v{step}\nv_mul_f32 v{step}, {fhex(1/32)}, v{step}")
            sincos(a, sf, step, 8, tc, ts, ta)
            for k in range(4):
                a(cvt(C2[T]+k, tc+2*k, tc+2*k+1)); a(cvt(S2[T]+k, ts+2*k, ts+2*k+1))
                src = tc if T else ts
                a(cvt(X2[T]+k, src+2*k, src+2*k+1, True, True))
        wa = V(8); ra = voff; so = step
        a(f"v_lshrrev_b32 v{t0}, 2, v{l}\nv_lshlrev_b32 v{xa}, 6, v{t0}\nv_lshl_add_u32 v{xa}, v{jj}, 3, v{xa}\nv_add_u32 v{xa}, s23, v{xa}")
        a(f"s_mul_i32 s24, s3, 2112\ns_add_u32 s24, s24, {LB}\nv_lshlrev_b32 v{t0}, 5, v{j}\nv_lshl_add_u32 v{t0}, v{g}, 3, v{t0}\nv_lshrrev_b32 v{t1}, 3, v{j}\nv_cmp_eq_u32 vcc, 1, v{t1}\nv_lshl_add_u32 v{t1}, v{t1}, 2, s24")
        for i in range(8):
            a(f"v_add_u32 v{ta}, {i}, v{t0}\nv_sub_u32 v{ta+1}, 512, v{ta}\nv_and_b32 v{ta+1}, 255, v{ta+1}\nv_cndmask_b32 v{ta}, v{ta}, v{ta+1}, vcc")
            a(f"v_lshrrev_b32 v{ta+1}, 5, v{ta}\nv_add_u32 v{ta}, v{ta}, v{ta+1}\nv_lshl_add_u32 v{wa+i}, v{ta}, 3, v{t1}")
        a(f"v_bfe_u32 v{t0}, v{l}, 2, 2\nv_mul_u32_u24 v{ra}, 2112, v{t0}\nv_lshl_add_u32 v{ra}, v{g}, 5, v{ra}\nv_lshl_add_u32 v{ra}, v{jj}, 3, v{ra}")
        a(f"s_mul_i32 s24, s3, 1056\ns_add_u32 s24, s24, {LB}\nv_add_u32 v{ra}, s24, v{ra}")
        a("s_lshr_b32 s24, s21, 4\ns_lshl_b32 s24, s24, 7\ns_lshl_b32 s27, s20, 4\ns_add_u32 s24, s24, s27\ns_and_b32 s27, s21, 15\ns_add_u32 s24, s24, s27")
        a("s_bfe_u32 s27, s24, 0x20002\ns_lshl_b32 s24, s24, 6\ns_lshl_b32 s28, s3, 21\ns_add_u32 s28, s28, s24")
        a(f"v_xor_b32 v{t0}, s27, v{jj}\nv_lshlrev_b32 v{t0}, 4, v{t0}\nv_lshrrev_b32 v{t1}, 2, v{l}\nv_lshl_add_u32 v{so}, v{t1}, 14, v{t0}")
        a("s_lshr_b32 s62, s2, 7\ns_and_b32 s24, s2, 7\ns_lshl_b32 s24, s24, 2\ns_bfe_u32 s27, s2, 0x40003\ns_lshl_b32 s27, s27, 6\ns_add_u32 s24, s24, s27\ns_lshl_b32 s27, s62, 10")
        a(f"v_bfe_u32 v{t0}, v{l}, 4, 1\nv_lshl_add_u32 v{jt}, v{t0}, 5, v{jj}\nv_add_u32 v{jt}, s24, v{jt}\nv_bfe_u32 v{t0}, v{l}, 3, 1\nv_lshl_add_u32 v{t0}, v{t0}, 10, v{jt}")
        a(f"v_sub_u32 v{t1}, 2048, v{t0}\nv_and_b32 v{t1}, 2047, v{t1}\nv_cmp_lt_u32 vcc, 31, v{l}\nv_and_b32 v{WS}, 4, v{l}")
        a(f"v_cndmask_b32 v{t0}, v{t0}, v{t1}, vcc\nv_cmp_ne_u32 vcc, 0, v{WS}\nv_mul_u32_u24 v{t0}, 1026, v{t0}\nv_add_u32 v{t0}, s27, v{t0}")
        a(f"v_mov_b32 v{ad}, s52\nv_mov_b32 v{t1}, s54\nv_cndmask_b32 v{ad}, v{ad}, v{t1}, vcc\nv_mov_b32 v{ad+1}, s53\nv_mov_b32 v{t1}, s55\nv_cndmask_b32 v{ad+1}, v{ad+1}, v{t1}, vcc")
        a(f"v_add_co_u32 v{ad}, vcc, v{ad}, v{t0}\nv_addc_co_u32 v{ad+1}, vcc, 0, v{ad+1}, vcc")
        a(f"s_lshl_b32 s24, s25, 7\nv_add_u32 v{kp}, s24, v{kp}")
        a("s_lshr_b32 s24, s26, 2\ns_lshl_b32 s24, s24, 12\ns_lshl_b32 s27, s20, 8\ns_and_b32 s25, s27, 0x400\ns_add_u32 s27, s27, s25\ns_add_u32 s24, s24, s27\ns_and_b32 s27, s26, 3\ns_lshl_b32 s27, s27, 6\ns_add_u32 s24, s24, s27")
        a(f"s_and_b32 s27, s3, 1\ns_lshl_b32 s27, s27, 10\ns_add_u32 s24, s24, s27\nv_lshlrev_b32 v{so2}, 13, v{kp}\nv_lshl_add_u32 v{so2}, v{jj}, 4, v{so2}\nv_add_u32 v{so2}, s24, v{so2}")
        srd(a, 16, 10, Z1_SIZE, Z1_OFF)
        stamp(a, "p1const")
        a(f"s_cmp_lt_u32 s3, 2\ns_cbranch_scc1 {name}_x0\ns_waitcnt vmcnt({NW0})\ns_branch {name}_x1\n{name}_x0:\ns_waitcnt vmcnt(0)\n{name}_x1:")
        for e in range(2):
            for tq in range(2):
                for h in range(2): a(f"ds_read_b64_tr_b16 {vr(X+8*e+4*tq+2*h,2)}, v{xa} offset:{2048*e+1024*h+32*tq}")
        a(f"s_or_b32 s24, s2, s3\ns_cbranch_scc1 {name}_nz2\nv_mov_b32 v{zt}, 1\nv_mov_b32 v{zt+1}, 0\nglobal_store_dword v{zt+1}, v{zt}, s[60:61] sc1\n{name}_nz2:")
        a(f"s_cmp_lt_u32 s3, 2\ns_cbranch_scc1 {name}_ns"); a(wl[NW0:])
        a(f"s_cmp_lg_u32 s3, 2\ns_cbranch_scc1 {name}_ns\nglobal_load_ushort v{WS}, {vr(ad,2)}, off\n{name}_ns:")
        stamp(a, "p1x")
        st = tc; rn = ts
        for e in range(2):
            for i in range(8):
                if not i & 1: a(f"s_waitcnt lgkmcnt({7-4*e-(i>>1)})")
                a(f"v_lshlrev_b32 v{P+16*e+2*i}, 16, v{X+8*e+i}\nv_and_b32 v{P+16*e+2*i+1}, 0xffff0000, v{X+8*e+i}")
                p = vr(P+16*e+2*i, 2); s_ = vr(st+4*e, 2); q_ = vr(st+4*e+2, 2)
                if i == 0: a(f"v_pk_mul_f32 {q_}, {p}, {p}")
                elif i == 1: a(f"v_pk_add_f32 {s_}, {p}, {vr(P+16*e,2)}\nv_pk_fma_f32 {q_}, {p}, {p}, {q_}")
                else: a(f"v_pk_add_f32 {s_}, {p}, {s_}\nv_pk_fma_f32 {q_}, {p}, {p}, {q_}")
        row_stats(a, st, st+2, st+4, st+6, rn, rn+2, tt)
        for k in range(16): a(norm(P+2*k, rn+2*(k>>3)))
        for k in range(16): a(cvt(X+k, P+2*k, P+2*k+1))
        A1 = [[X + 8*e + 4*tq for tq in range(2)] for e in range(2)]
        D = sf
        D1 = lambda tq, T, part: D + ((T*2+tq)*2+part)*4
        for T in range(2):
            for tq in range(2): a(mfma(D1(tq,T,0), A1[0][tq], C1[T], True)); a(mfma(D1(tq,T,1), A1[1][tq], C1[T], True))
            for tq in range(2): a(mfma(D1(tq,T,0), A1[1][tq], S1[T], False)); a(mfma(D1(tq,T,1), A1[0][tq], N1[T], False))
        A2 = [[X + 8*T + 4*p for p in range(2)] for T in range(2)]
        D2 = lambda T1, T2, part: P + ((T2*2+part)*2+T1)*4
        def outw(T):
            o = []
            for part in range(2):
                for r in range(4):
                    d = D2(T,0,part)+r
                    o += [cvt(d, d, D2(T,1,part)+r), f"ds_write_b32 v{wa+4*T+r}, v{d} offset:{part*8448}"]
            return o
        for T in range(2):
            for tq in range(2):
                a(twiddle(D1(tq,T,0), D1(tq,T,1), TWc[T][tq], TWs[T][tq], tt))
                for part in range(2):
                    for k in range(2): a(cvt(A2[T][part]+2*tq+k, D1(tq,T,part)+2*k, D1(tq,T,part)+2*k+1))
            mm = []
            for T2 in range(2):
                mm += [mfma(D2(T,T2,0), A2[T][0], C2[T2], True), mfma(D2(T,T2,1), A2[T][0] if T2 else A2[T][1], S2[T2] if T2 else C2[T2], True)]
            for T2 in range(2):
                mm += [mfma(D2(T,T2,0), A2[T][1], S2[T2], False), mfma(D2(T,T2,1), A2[T][1] if T2 else A2[T][0], X2[T2], False)]
            a(interleave(mm, outw(0), 2) if T else mm)
        a(outw(1))
        stamp(a, "p1dft")
        fg = s.O
        a(f"s_cmp_lg_u32 s3, 0\ns_cbranch_scc1 {name}_nf\nv_mov_b32 v{t0}, 0\nglobal_load_dword v{fg}, v{t0}, s[60:61] sc1\n{name}_nf:")
        a(f"s_waitcnt lgkmcnt(0)\ns_barrier\ns_cmp_ge_u32 s3, 2\ns_cbranch_scc1 {name}_nst")
        stamp(a, "p1bar")
        for n in range(8):
            o = n*128 + (n >> 1)*8
            a(f"ds_read_b64_tr_b16 {vr(P+4*n,2)}, v{ra} offset:{o}\nds_read_b64_tr_b16 {vr(P+4*n+2,2)}, v{ra} offset:{o+8448}")
        for n in range(8): a(f"s_waitcnt lgkmcnt({14-2*n})\nbuffer_store_dwordx4 {vr(P+4*n,4)}, v{so}, s[16:19], s28 offen sc1\ns_add_u32 s28, s28, 0x40000")
        a(f"{name}_nst:")
        s.filt(a)
    def drain(s, a):
        name = s.name; fg = s.O; t0 = s.t0
        a(f"s_waitcnt vmcnt(0)\ns_cmp_lg_u32 s3, 0\ns_cbranch_scc1 {name}_dd")
        a(f"s_mov_b32 s63, 0x40000\n{name}_ip:\nv_readfirstlane_b32 s40, v{fg}\ns_cmp_lg_u32 s40, 0\ns_cbranch_scc1 {name}_dd\ns_sub_u32 s63, s63, 1\ns_cbranch_scc1 {name}_dd")
        a(f"v_mov_b32 v{t0}, 0\nglobal_load_dword v{fg}, v{t0}, s[60:61] sc1\ns_waitcnt vmcnt(0)\ns_branch {name}_ip\n{name}_dd:")
    def filt(s, a):
        name = s.name; l = L_
        W, O, kp, jj, jt, WS, so2, t0, t1 = s.W, s.O, s.kp, s.jj, s.jt, s.WS, s.so2, s.t0, s.t1
        a(f"s_cmp_lt_u32 s3, 2\ns_cbranch_scc1 {name}_fd")
        srd(a, 36, 10, WT_SIZE, WT_OFF)
        a(f"s_mov_b32 s40, 0x05040100\ns_mov_b32 s41, 0x07060302\nv_cmp_ne_u32 vcc, 0, v{kp}\ns_waitcnt vmcnt(0)")
        stamp(a, "p1w")
        for n, (kh, e) in enumerate([(1, 0), (1, 1), (1, 2), (1, 3), (0, 1), (0, 2), (0, 3), (0, 0)]):
            o = O + 4*(n & 3)
            for q in range(4): a(f"v_perm_b32 v{o+q}, v{W+16*kh+4*q+2+(e>>1)}, v{W+16*kh+4*q+(e>>1)}, s{40+(e&1)}")
            a(f"s_mov_b32 s42, {(64*kh+e)*8192}")
            if n == 7: a("s_mov_b64 exec, vcc")
            a(f"buffer_store_dwordx4 {vr(o,4)}, v{so2}, s[36:39], s42 offen sc1")
        a(f"s_mov_b64 exec, -1\ns_cmp_lg_u32 s3, 2\ns_cbranch_scc1 {name}_ns2")
        s3_ = s.ad; o = O
        a(f"v_bfe_u32 v{t0}, v{jt}, 4, 1\nv_lshlrev_b32 v{s3_}, 12, v{t0}\nv_bfe_u32 v{t0}, v{jt}, 9, 1\nv_lshl_add_u32 v{s3_}, v{t0}, 11, v{s3_}")
        a(f"v_bfe_u32 v{t0}, v{jt}, 6, 1\nv_lshl_add_u32 v{s3_}, v{t0}, 10, v{s3_}\nv_bfe_u32 v{t0}, v{jt}, 7, 2\nv_lshl_add_u32 v{s3_}, v{t0}, 8, v{s3_}")
        a(f"v_and_b32 v{t0}, 15, v{jt}\nv_lshl_add_u32 v{s3_}, v{t0}, 4, v{s3_}\ns_lshl_b32 s42, s62, 22")
        a(f"v_lshlrev_b32 v{WS}, 16, v{WS}\nv_lshlrev_b32 v{t1}, 29, v{l}\nv_and_b32 v{t1}, 0x80000000, v{t1}\nv_mov_b32 v{t0}, v{WS}\nv_permlane32_swap_b32 v{WS}, v{t0}")
        a(f"v_xor_b32 v{t0}, v{t0}, v{t1}\nv_add_f32 v{t0}, v{t0}, v{WS}\nv_mul_f32 v{t0}, 0.5, v{t0}")
        a(f"v_mov_b32 v{t1}, v{t0} row_shl:4 row_mask:0xf bank_mask:0xf"); a(cvt(o, t0, t1))
        a(f"v_mov_b32 v{o+1}, v{o} row_shl:8 row_mask:0xf bank_mask:0xf\nv_mov_b32 v{o+2}, v{o}\nv_mov_b32 v{o+3}, v{o+1}")
        a(f"v_permlane16_swap_b32 v{o}, v{o+2}\nv_permlane16_swap_b32 v{o+1}, v{o+3}")
        a(f"s_mov_b64 exec, 15\nbuffer_store_dwordx4 {vr(o,4)}, v{s3_}, s[36:39], s42 offen sc1\ns_mov_b64 exec, -1\n{name}_ns2:\n{name}_fd:")

class P2:
    def __init__(s, name):
        s.name = name; V = Alloc(4)
        s.vo = V(); s.step = V(); s.W = V(32)
        s.sf = V(8); s.tc = V(8); s.ta = V(8); s.ts = V(8)
        s.B = [[V(6) for _ in range(2)] for _ in range(2)]; s.BR = [[V(6) for _ in range(2)] for _ in range(2)]
        s.TWc = [[V(4) for _ in range(2)] for _ in range(2)]; s.TWs = [[V(4) for _ in range(2)] for _ in range(2)]
        s.MC = V(16); s.MS = V(16); s.D = V(32); s.E = V(32)
        s.ra = V(); s.xa = V(); s.pa = V(); s.so = V(); s.ow = V(); s.t0 = V()
    def pre(s, a):
        l, j, g = L_, J_, G_
        vo, step, sf, tc, ta, ts, t0 = s.vo, s.step, s.sf, s.tc, s.ta, s.ts, s.t0
        a("s_and_b32 s20, s2, 7\ns_lshl_b32 s20, s20, 5\ns_lshr_b32 s21, s2, 3\ns_add_u32 s20, s20, s21")
        a(f"s_lshl_b32 s21, s3, 12\ns_lshl_b32 s22, s20, 14\ns_add_u32 s22, s22, s21\ns_add_u32 s21, s21, {LB}\nv_lshlrev_b32 v{vo}, 4, v{l}")
        a("s_sub_u32 s23, 512, s20\ns_add_u32 s24, s3, 1\ns_bitcmp1_b32 s24, 1\ns_cselect_b32 s23, s23, s20\ns_xor_b32 s28, s3, 3")
        a(f"s_cmp_lg_u32 s20, 0\ns_cbranch_scc1 {s.name}_reg\ns_xor_b32 s28, s3, 1\ns_cmp_ge_u32 s3, 2\ns_cselect_b32 s23, 256, s23\n{s.name}_reg:")
        a("s_lshl_b32 s23, s23, 13\ns_add_u32 s24, s23, 4096")
        srd(a, 12, 10, Z1_SIZE, Z1_OFF); srd(a, 16, 10, WT_SIZE, WT_OFF); srd(a, 44, 10, Z2_SIZE, Z2_OFF)
        a(f"s_lshl_b32 s28, s28, 13\ns_add_u32 s28, s28, {LB+16384}\nv_add_u32 v{s.pa}, s28, v{vo}\ns_lshl_b32 s28, s3, 13\ns_add_u32 s28, s28, {LB+16384}\nv_add_u32 v{s.xa}, s28, v{vo}")
        a(f"v_lshlrev_b32 v{step}, 2, v{g}\nv_cvt_f32_u32 v{sf}, v{step}")
        for i in range(1, 4): a(f"v_add_f32 v{sf+i}, 1.0, v{sf+i-1}")
        for i in range(4): a(f"v_add_f32 v{sf+4+i}, {fhex(16.0)}, v{sf+i}")
        dft_block(a, s.B, lambda T: a(f"v_or_b32 v{step}, {16*T}, v{j}"), sf, tc, ts, ta, step, "NCS")
        a(f"v_bfe_u32 v{t0}, v{l}, 2, 2\nv_xor_b32 v{t0}, s3, v{t0}\nv_lshlrev_b32 v{t0}, 4, v{t0}\nv_lshl_add_u32 v{s.ra}, v{l}, 6, v{t0}\nv_add_u32 v{s.ra}, {LB}, v{s.ra}")
        for T in range(2):
            a(f"v_or_b32 v{step}, {16*T}, v{j}\nv_cvt_f32_u32 v{step}, v{step}\nv_mul_f32 v{step}, {fhex(1/1024)}, v{step}")
            for i in range(8): a(f"v_mul_f32 v{ta+i}, v{sf+i}, v{step}")
            for i in range(8): a(f"v_cos_f32 v{s.TWc[T][i>>2]+(i&3)}, v{ta+i}\nv_sin_f32 v{s.TWs[T][i>>2]+(i&3)}, v{ta+i}")
        a(f"s_bitcmp1_b32 s3, 0\ns_cselect_b32 s25, {fhex(-1.0)}, {fhex(1.0)}\ns_mov_b32 s26, {fhex(1/64)}")
        for T in range(2):
            a(f"v_or_b32 v{step}, {16*T}, v{j}\nv_cvt_f32_u32 v{step}, v{step}\nv_mul_f32 v{step}, {fhex(1/2048)}, v{step}")
            for i in range(8): a(f"v_fma_f32 v{ta+i}, v{sf+i}, s26, v{step}")
            for i in range(8): a(f"v_cos_f32 v{tc+i}, v{ta+i}\nv_sin_f32 v{ts+i}, v{ta+i}")
            for i in range(8): a(f"v_mul_f32 v{s.MC+8*T+i}, s25, v{tc+i}\nv_mul_f32_e64 v{s.MS+8*T+i}, s25, -v{ts+i}")
        a("s_bfe_u32 s27, s20, 0x20001")
        dft_block(a, s.BR, lambda T: a(f"v_xor_b32 v{step}, s27, v{j}\nv_or_b32 v{step}, {16*T}, v{step}"), sf, tc, ts, ta, step, "NCS")
        a(f"s_bfe_u32 s27, s20, 0x10003\ns_xor_b32 s27, s27, s3\nv_bfe_u32 v{t0}, v{l}, 1, 2\nv_xor_b32 v{t0}, s27, v{t0}\nv_lshlrev_b32 v{t0}, 4, v{t0}\nv_lshl_add_u32 v{s.ow}, v{l}, 6, v{t0}\nv_add_u32 v{s.ow}, {LB}, v{s.ow}")
        a(f"v_bfe_u32 v{t0}, v{l}, 3, 2\nv_xor_b32 v{t0}, v{l}, v{t0}\nv_and_b32 v{t0}, 3, v{t0}\nv_lshlrev_b32 v{t0}, 4, v{t0}\nv_lshrrev_b32 v{step}, 2, v{l}\nv_lshl_add_u32 v{s.so}, v{step}, 17, v{t0}")
        a("s_lshl_b32 s32, s3, 14\ns_lshl_b32 s28, s20, 6\ns_add_u32 s32, s32, s28\ns_add_u32 s33, s32, 0x10000\ns_add_u32 s34, s32, 0x200000\ns_add_u32 s35, s32, 0x210000")
        a(f"s_lshr_b32 s28, s3, 1\ns_or_b32 s29, s28, s20\ns_cbranch_scc1 {s.name}_nsp\ns_lshl_b32 s28, s3, 13\ns_add_u32 s28, s28, {LB+16384}")
        for T1 in range(2):
            a(f"v_sub_u32 v{tc}, {32-16*T1}, v{j}\nv_and_b32 v{tc}, 31, v{tc}\nv_cmp_eq_u32 vcc, 0, v{tc}\nv_lshrrev_b32 v{tc+1}, 4, v{tc}\nv_and_b32 v{tc}, 15, v{tc}\nv_lshlrev_b32 v{tc}, 4, v{tc}")
            a(f"v_lshl_add_u32 v{tc}, v{tc+1}, 12, v{tc}\nv_add_u32 v{tc}, s28, v{tc}\nv_cndmask_b32 v{tc+1}, 31, 32, vcc\nv_lshlrev_b32 v{tc+2}, 2, v{g}\nv_sub_u32 v{tc+1}, v{tc+1}, v{tc+2}")
            for q in range(8):
                a(f"v_subrev_u32 v{tc+2}, {16*(q>>2)+(q&3)}, v{tc+1}\nv_bfe_u32 v{tc+3}, v{tc+2}, 4, 1\nv_lshl_add_u32 v{tc+4}, v{tc+3}, 11, v{tc}\nv_bfe_u32 v{tc+3}, v{tc+2}, 2, 2\nv_lshl_add_u32 v{tc+4}, v{tc+3}, 8, v{tc+4}")
                a(f"v_and_b32 v{tc+3}, 3, v{tc+2}\nv_lshl_add_u32 v{tc+4}, v{tc+3}, 2, v{tc+4}\nv_accvgpr_write_b32 a{8*T1+q}, v{tc+4}")
        a(f"{s.name}_nsp:")
    def main(s, a, hook):
        W, MC, MS, D, E, B, BR = s.W, s.MC, s.MS, s.D, s.E, s.B, s.BR
        X = s.sf; tt = s.ta; u = s.ts
        a("s_mov_b32 m0, s21")
        for n in range(4): a(f"buffer_load_dwordx4 v{s.vo}, s[12:15], s22 offen offset:{1024*n} sc1 lds")
        a("s_barrier")
        for n in range(8): a(f"buffer_load_dwordx4 {vr(W+4*n,4)}, v{s.vo}, s[16:19], s{23+n//4} offen offset:{1024*(n%4)} sc1")
        nx = hook("p2a")
        a(f"s_waitcnt vmcnt({8+nx})\ns_barrier")
        stamp(a, "p2ld")
        for n in range(4): a(f"ds_read_b128 {vr(X+4*n,4)}, v{s.ra} offset:{4096*n}")
        nx += hook("p2b")
        acc = lambda base, x, y, part: base + ((x*2+y)*2+part)*4
        def stage(dst, cst, data_is_a, waits=None):
            o = []
            for x in range(2):
                for t in range(2):
                    if waits: o.append(f"s_waitcnt lgkmcnt({3-2*x-t})")
                    for y in range(2):
                        for part in range(2):
                            c = cst[y][t] + (2 if part == 0 else 0); d = X+4*(2*x+t)
                            o.append(mfma(dst(x,y,part), d, c, t == 0) if data_is_a else mfma(dst(x,y,part), c, d, t == 0))
            return o
        pack = lambda dst, re, im: [cvt(dst, re, re+1), cvt(dst+1, re+2, re+3), cvt(dst+2, im, im+1), cvt(dst+3, im+2, im+3)]
        D1 = lambda Tq, T1, part: acc(D, Tq, T1, part)
        a(stage(D1, B, True, waits=True))
        for T1 in range(2):
            for Tq in range(2):
                a(twiddle(D1(Tq,T1,0), D1(Tq,T1,1), s.TWc[T1][Tq], s.TWs[T1][Tq], tt)); a(pack(X+4*(2*T1+Tq), D1(Tq,T1,0), D1(Tq,T1,1)))
        D2 = lambda T1, T2, part: acc(E, T1, T2, part)
        def coef(n):
            e0 = 2*n; w = W + 4*n; o = []
            for k in range(2):
                o += [f"v_lshlrev_b32 v{u+k}, 16, v{w+2*k}", f"v_and_b32 v{u+2+k}, 0xffff0000, v{w+2*k}", f"v_lshlrev_b32 v{u+4+k}, 16, v{w+2*k+1}", f"v_and_b32 v{u+6+k}, 0xffff0000, v{w+2*k+1}"]
            o += [f"v_pk_add_f32 {vr(w,2)}, {vr(u,2)}, {vr(u+4,2)}", f"v_pk_add_f32 {vr(w+2,2)}, {vr(u+2,2)}, {vr(u+6,2)}",
                  f"v_pk_add_f32 {vr(u,2)}, {vr(u,2)}, {vr(u+4,2)} neg_lo:[0,1] neg_hi:[0,1]", f"v_pk_add_f32 {vr(u+2,2)}, {vr(u+2,2)}, {vr(u+6,2)} neg_lo:[0,1] neg_hi:[0,1]",
                  f"v_pk_fma_f32 {vr(w,2)}, {vr(u,2)}, {vr(MS+e0,2)}, {vr(w,2)}", f"v_pk_fma_f32 {vr(w+2,2)}, {vr(u+2,2)}, {vr(MS+e0,2)}, {vr(w+2,2)}",
                  f"v_pk_mul_f32 {vr(MS+e0,2)}, {vr(u,2)}, {vr(MC+e0,2)}", f"v_pk_mul_f32 {vr(MC+e0,2)}, {vr(u+2,2)}, {vr(MC+e0,2)}"]
            return o
        a(f"s_waitcnt vmcnt({nx})")
        a(interleave(stage(D2, B, False), coef(0) + coef(1), 2))
        a(interleave([f"ds_write_b128 v{s.xa}, {vr(E+4*n,4)} offset:{1024*n}" for n in range(8)], coef(2) + coef(3), 4))
        a("s_waitcnt lgkmcnt(0)\ns_barrier")
        a(f"s_cmp_lg_u32 s29, 0\ns_cbranch_scc1 {s.name}_rd")
        for q in range(16):
            a(f"v_accvgpr_read_b32 v{s.t0}, a{q}")
            for part in range(2): a(f"ds_read_b32 v{D+8*(q>>2)+4*part+(q&3)}, v{s.t0} offset:{1024*part}")
        a("s_waitcnt lgkmcnt(0)")
        for q in range(16): a(f"v_xor_b32 v{D+8*(q>>2)+4+(q&3)}, 0x80000000, v{D+8*(q>>2)+4+(q&3)}")
        a(f"s_branch {s.name}_mid\n{s.name}_rd:")
        for n in range(8): a(f"ds_read_b128 {vr(D+4*n,4)}, v{s.pa} offset:{1024*n}")
        a(f"{s.name}_mid:")
        for n in range(4, 8): a(coef(n))
        stamp(a, "p2mid")
        for T1 in range(2):
            for T2 in range(2):
                n = T1*2+T2
                if n == 0: a("s_waitcnt lgkmcnt(0)")
                for h in (0, 2):
                    e0 = 4*n + h; ar_, ai, br, bi = vr(W+2*e0,2), vr(W+2*e0+2,2), vr(MS+e0,2), vr(MC+e0,2)
                    wr, wi = vr(D2(T1,T2,0)+h,2), vr(D2(T1,T2,1)+h,2)
                    orr, oi = vr(acc(D,T1,T2,0)+h,2), vr(acc(D,T1,T2,1)+h,2)
                    x, y = vr(tt+h,2), vr(tt+4+h,2)
                    a(f"v_pk_mul_f32 {x}, {ar_}, {wr}\nv_pk_mul_f32 {y}, {ar_}, {wi} neg_lo:[1,0] neg_hi:[1,0]")
                    a(f"v_pk_fma_f32 {x}, {ai}, {wi}, {x} neg_lo:[1,0,0] neg_hi:[1,0,0]\nv_pk_fma_f32 {y}, {ai}, {wr}, {y} neg_lo:[1,0,0] neg_hi:[1,0,0]")
                    a(f"v_pk_fma_f32 {x}, {br}, {oi}, {x} neg_lo:[1,0,0] neg_hi:[1,0,0]\nv_pk_fma_f32 {y}, {br}, {orr}, {y} neg_lo:[1,0,0] neg_hi:[1,0,0]")
                    a(f"v_pk_fma_f32 {x}, {bi}, {orr}, {x} neg_lo:[1,0,0] neg_hi:[1,0,0]\nv_pk_fma_f32 {y}, {bi}, {oi}, {y}")
                a(pack(X+4*n, tt, tt+4))
        DA = lambda T1, Tq, part: acc(D, T1, Tq, part)
        a(stage(DA, B, True))
        for Tq in range(2):
            for T1 in range(2):
                a(twiddle(DA(T1,Tq,0), DA(T1,Tq,1), s.TWc[Tq][T1], s.TWs[Tq][T1], tt)); a(pack(X+4*(2*Tq+T1), DA(T1,Tq,0), DA(T1,Tq,1)))
        DB = lambda Tq, Tp, part: acc(E, Tq, Tp, part)
        a(stage(DB, BR, False))
        a(f"v_add_u32 v{s.vo}, s21, v{s.vo}\ns_mul_i32 s28, s3, 3072\nv_subrev_u32 v{s.vo}, s28, v{s.vo}")
        for n in range(4):
            o = D + 4*n
            for r in range(4): a(cvt(o+r, DB(n>>1,n&1,0)+r, DB(n>>1,n&1,1)+r, False, True))
            a(f"ds_write_b128 v{s.ow}, {vr(o,4)} offset:{4096*n}")
        a("s_waitcnt lgkmcnt(0)\ns_barrier")
        for n in range(4): a(f"ds_read_b128 {vr(E+4*n,4)}, v{s.vo} offset:{4096*n}")
        for n in range(4): a(f"s_waitcnt lgkmcnt({3-n})\nbuffer_store_dwordx4 {vr(E+4*n,4)}, v{s.so}, s[44:47], s{32+n} offen sc1")

class P3:
    def __init__(s, name):
        s.name = name; V = Alloc(4, 232)
        s.vo = V(); s.xo = V(); s.XR = V(16)
        s.sf = V(8); s.kf = V(8); s.ta = V(8); s.tc = V(8); s.ts = V(8)
        s.B1 = [[[V(4) for _ in range(2)] for _ in range(2)] for _ in range(2)]
        s.B2 = [[V(6) for _ in range(2)] for _ in range(2)]
        s.TWc = [[V(4) for _ in range(2)] for _ in range(2)]; s.TWs = [[V(4) for _ in range(2)] for _ in range(2)]
        s.ra = V(2); s.sox = V(4); s.D = V(32); s.E = V(32)
        s.step = V(); s.t0 = V(); s.t1 = V(); s.sg = V(); s.wa = V()
    def xloads(s, a):
        l, j, g = L_, J_, G_
        a(ROWPAIR)
        a(f"v_lshlrev_b32 v{s.xo}, 6, v{j}\nv_lshl_add_u32 v{s.xo}, v{g}, 4, v{s.xo}")
        a(f"s_lshl_b32 s23, s3, 12\ns_add_u32 s23, s23, {XL}\nv_add_u32 v{s.t0}, s23, v{s.xo}")
        for n in range(4): a(f"ds_read_b128 {vr(s.XR+4*n,4)}, v{s.t0} offset:{1024*n}")
    def pre(s, a):
        l, j, g = L_, J_, G_
        sf, kf, ta, tc, ts, step, t0, t1, sg, ra = s.sf, s.kf, s.ta, s.tc, s.ts, s.step, s.t0, s.t1, s.sg, s.ra
        a(f"s_lshl_b32 s23, s3, 12\ns_lshl_b32 s25, s2, 14\ns_add_u32 s24, s25, s23\ns_add_u32 s23, s23, {LB}\nv_lshlrev_b32 v{s.vo}, 4, v{l}")
        srd(a, 12, 10, Z2_SIZE, Z2_OFF); srd(a, 16, 10, HN_SIZE, HN_OFF)
        a(f"v_lshlrev_b32 v{step}, 2, v{g}\nv_cvt_f32_u32 v{sf}, v{step}")
        for i in range(1, 4): a(f"v_add_f32 v{sf+i}, 1.0, v{sf+i-1}")
        for i in range(4): a(f"v_add_f32 v{sf+4+i}, {fhex(16.0)}, v{sf+i}")
        a(f"v_and_b32 v{t0}, 1, v{g}\nv_cvt_f32_u32 v{t1}, v{t0}\nv_mul_u32_u24 v{t0}, 7, v{t0}\nv_lshl_add_u32 v{t0}, v{g}, 3, v{t0}\nv_cvt_f32_u32 v{kf}, v{t0}\nv_fma_f32 v{t1}, v{t1}, -2.0, 1.0")
        for i in range(1, 8): a(f"v_add_f32 v{kf+i}, v{kf+i-1}, v{t1}")
        a(f"v_lshrrev_b32 v{t0}, 1, v{g}\nv_cvt_f32_u32 v{t1}, v{t0}\nv_fma_f32 v{sg}, v{t1}, -2.0, 1.0\ns_mov_b32 s26, {fhex(2.0**-21)}")
        for T in range(2):
            a(f"v_lshrrev_b32 v{step}, 2, v{j}\nv_lshlrev_b32 v{step}, 3, v{step}\nv_and_or_b32 v{step}, v{j}, 3, v{step}")
            if T: a(f"v_or_b32 v{step}, 4, v{step}")
            a(f"v_cvt_f32_u32 v{step}, v{step}\nv_mul_f32 v{step}, {fhex(1/32)}, v{step}")
            sincos(a, kf, step, 8, tc, ts, ta)
            for i in range(8):
                a(f"v_mul_f32 v{t0}, v{sg}, v{ts+i}\nv_mul_f32 v{t1}, v{sg}, v{tc+i}")
                a(cvt(s.B1[T][i>>2][0]+(i&3), tc+i, t0, False, True)); a(cvt(s.B1[T][i>>2][1]+(i&3), ts+i, t1))
            a(f"v_mul_f32 v{step}, {fhex(1/32)}, v{step}")
            sincos(a, sf, step, 8, tc, ts, ta)
            for i in range(8): a(f"v_mul_f32 v{s.TWc[T][i>>2]+(i&3)}, s26, v{tc+i}\nv_mul_f32 v{s.TWs[T][i>>2]+(i&3)}, s26, v{ts+i}")
        dft_block(a, s.B2, lambda T: a(f"v_or_b32 v{step}, {16*T}, v{j}"), sf, tc, ts, ta, step, "SCN")
        a(f"v_and_b32 v{t1}, 1, v{g}\nv_cmp_eq_u32 vcc, 1, v{t1}\nv_lshrrev_b32 v{sg}, 1, v{g}\nv_lshl_or_b32 v{sg}, v{t1}, 1, v{sg}")
        for Tk in range(2):
            a(f"v_add_u32 v{t0}, {16*Tk}, v{j}\nv_sub_u32 v{step}, 32, v{t0}\nv_cndmask_b32 v{t0}, v{t0}, v{step}, vcc")
            a(f"v_bfe_u32 v{step}, v{t0}, 3, 1\nv_xor_b32 v{step}, v{step}, v{sg}\nv_lshlrev_b32 v{step}, 4, v{step}\nv_lshl_add_u32 v{ra+Tk}, v{t0}, 6, v{step}")
            a(f"v_bfe_u32 v{step}, v{t0}, 1, 2\nv_xor_b32 v{step}, s3, v{step}\nv_lshl_add_u32 v{ra+Tk}, v{step}, 2, v{ra+Tk}\nv_add_u32 v{ra+Tk}, {LB}, v{ra+Tk}")
        a(f"s_lshl_b32 s27, s3, 1\nv_and_b32 v{t0}, 7, v{j}\nv_xor_b32 v{t0}, s27, v{t0}\nv_lshlrev_b32 v{t0}, 4, v{t0}")
        a(f"v_lshl_add_u32 v{t0}, v{g}, 7, v{t0}\nv_lshl_add_u32 v{s.wa}, v{j}, 9, v{t0}\nv_add_u32 v{s.wa}, {LB}, v{s.wa}")
        a(f"v_lshrrev_b32 v{t0}, 5, v{l}\nv_and_b32 v{t1}, 7, v{l}\nv_xor_b32 v{t1}, v{t1}, v{t0}\nv_lshlrev_b32 v{s.sox}, 4, v{t1}")
        a(f"v_bfe_u32 v{t1}, v{l}, 3, 2\nv_lshl_add_u32 v{s.sox}, v{t1}, 8, v{s.sox}\nv_lshl_add_u32 v{s.sox}, v{t0}, 10, v{s.sox}")
        for n in range(1, 4): a(f"v_xor_b32 v{s.sox+n}, {32*n}, v{s.sox}")
        a("s_lshl_b32 s28, s20, 4\ns_lshr_b32 s29, s21, 1\ns_add_u32 s28, s28, s29\ns_lshl_b32 s28, s28, 15\ns_and_b32 s29, s21, 1\ns_lshl_b32 s29, s29, 7\ns_add_u32 s28, s28, s29")
        a("s_lshl_b32 s29, s3, 13\ns_add_u32 s28, s28, s29\ns_add_u32 s29, s28, 4096")
    def main(s, a, hook):
        HNL = 17408; XR, D, E, vo = s.XR, s.D, s.E, s.vo
        X = s.sf; tt = s.ta
        a("s_mov_b32 m0, s23")
        for n in range(4): a(f"buffer_load_dwordx4 v{vo}, s[12:15], s24 offen offset:{1024*n} sc1 lds")
        a(f"s_mov_b32 m0, {LB+16384}\ns_mov_b64 exec, 15\nbuffer_load_dwordx4 v{vo}, s[12:15], s25 offen sc1 lds\ns_mov_b64 exec, -1")
        nx = hook("p3a")
        srd(a, 12, 10, H_SIZE, H_OFF)
        a(f"v_add_u32 v{vo}, s23, v{vo}\ns_waitcnt lgkmcnt(0)")
        for k in range(16): a(f"v_lshlrev_b32 v{E+2*k}, 16, v{XR+k}\nv_and_b32 v{E+2*k+1}, 0xffff0000, v{XR+k}")
        a(f"s_waitcnt vmcnt({nx})\ns_barrier")
        stamp(a, "p3ld")
        for Tk in range(2):
            for m in range(8): a(f"ds_read_b32 v{X+8*Tk+m}, v{s.ra+Tk} offset:{2048*m}")
        hook("p3b")
        D1 = lambda Tk, T1, part: D + ((Tk*2+T1)*2+part)*4
        for Tk in range(2):
            for t in range(2):
                a(f"s_waitcnt lgkmcnt({12-8*Tk-4*t})")
                for T1 in range(2):
                    for part in range(2): a(mfma(D1(Tk,T1,part), X+8*Tk+4*t, s.B1[T1][t][part], t == 0))
        D2 = lambda T1, T2, part: E + ((part*2+T2)*2+T1)*4
        for T1 in range(2):
            for Tk in range(2):
                re, im = D1(Tk,T1,0), D1(Tk,T1,1); o = X+4*(2*T1+Tk)
                a(twiddle(re, im, s.TWc[T1][Tk], s.TWs[T1][Tk], tt, inverse=True))
                a([cvt(o, re, re+1), cvt(o+1, re+2, re+3), cvt(o+2, im, im+1), cvt(o+3, im+2, im+3)])
            for Tk in range(2):
                for T2 in range(2):
                    for part in range(2): a(mfma(D2(T1,T2,part), X+4*(2*T1+Tk), s.B2[T2][Tk] + (2 if part == 0 else 0), False))
        hook("p3c")
        st = s.tc; rn = s.ts
        for k in range(16):
            e = k // 8; p = vr(E+2*k, 2); s_ = vr(st+4*e, 2); q_ = vr(st+4*e+2, 2)
            if k % 8 == 0: a(f"v_pk_mul_f32 {q_}, {p}, {p}")
            elif k % 8 == 1: a(f"v_pk_add_f32 {s_}, {p}, {vr(E+2*k-2,2)}\nv_pk_fma_f32 {q_}, {p}, {p}, {q_}")
            else: a(f"v_pk_add_f32 {s_}, {p}, {s_}\nv_pk_fma_f32 {q_}, {p}, {p}, {q_}")
        row_stats(a, st, st+2, st+4, st+6, rn, rn+2, tt)
        a(f"v_xor_b32 v{s.t0}, 16, v{s.wa}")
        for n in range(4):
            e, T2 = n >> 1, n & 1
            for k in range(4): a(cvt(XR+4*n+k, E+8*n+2*k, E+8*n+2*k+1))
            for k in range(4): a(norm(E+8*n+2*k, rn+2*e))
            for k in range(4): a(cvt(X+4*n+k, E+8*n+2*k, E+8*n+2*k+1))
            a(f"ds_write_b128 v{s.t0 if e else s.wa}, {vr(X+4*n,4)} offset:{HNL+8192*T2}")
        a("s_waitcnt lgkmcnt(0)\ns_barrier")
        for n in range(4): a(f"ds_read_b128 {vr(D+4*n,4)}, v{vo} offset:{HNL+1024*n}")
        for n in range(4): a(f"s_waitcnt lgkmcnt({3-n})\nbuffer_store_dwordx4 {vr(D+4*n,4)}, v{s.sox+n}, s[16:19], s{28+n//2} offen offset:{2048*(n&1)} sc1")
        for n in range(4): a(f"buffer_store_dwordx4 {vr(XR+4*n,4)}, v{s.xo}, s[12:15], s22 offen offset:{1024*n} sc1")
```

```python
import re

TRANS = ("v_exp_", "v_log_", "v_rcp_", "v_rsq_", "v_sqrt_", "v_sin_", "v_cos_")

def regs_of(tok):
    tok = tok.strip().lstrip("-")
    if tok.startswith("abs(") or tok.startswith("|"):
        tok = tok.strip("|").replace("abs(", "").rstrip(")")
    m = re.fullmatch(r"([vas])(\d+)", tok)
    if m: return [(m.group(1), int(m.group(2)))]
    m = re.fullmatch(r"([vas])\[(\d+):(\d+)\]", tok)
    if m: return [(m.group(1), i) for i in range(int(m.group(2)), int(m.group(3)) + 1)]
    if tok in ("vcc", "exec", "m0"): return [(tok, 0)]
    if tok in ("vcc_lo", "vcc_hi"): return [("vcc", 0)]
    if tok in ("exec_lo", "exec_hi"): return [("exec", 0)]
    return []

class Ins:
    def __init__(self, text):
        self.text = text
        t = text.split(";")[0].strip()
        self.label = None; self.op = None
        self.defs = set(); self.uses = set(); self.srcc = set(); self.srcab = set(); self.sdata = set()
        self.kind = "other"; self.ws = 1
        if not t or t.startswith("."):
            self.kind = "nop0"; self.ws = 0; return
        if t.endswith(":"):
            self.label = t[:-1]; self.kind = "label"; self.ws = 0; return
        p = t.split(None, 1); op = self.op = p[0]
        rest = p[1] if len(p) > 1 else ""
        ops = []
        for part in re.split(r",(?![^\[]*\])", rest):
            ops.append(part.strip().split()[0] if part.strip() else "")
        self.ops = ops; R = [regs_of(o) for o in ops]
        flat = lambda xs: set(r for x in xs for r in x)
        self.dpp = bool(re.search(r"row_|quad_perm|wave_", rest))
        if op == "s_nop": self.kind = "snop"; self.ws = int(ops[0], 0) + 1
        elif op.startswith("v_mfma"):
            self.kind = "mfma"; self.passes = 8 if "32x32" in op else 4
            self.defs = set(R[0]); self.srcab = flat(R[1:3]); self.srcc = set(R[3]); self.uses = self.srcab | self.srcc
            self.dlist = R[0]; self.clist = R[3]
        elif op.startswith("v_"):
            self.kind = "valu"; self.trans = op.startswith(TRANS)
            if op.startswith("v_permlane") and "swap" in op: self.defs = flat(R[:2]); self.uses = flat(R[:2])
            elif re.match(r"v_(add|sub|subrev)_co|v_(addc|subb)_co", op): self.defs = flat(R[:2]); self.uses = flat(R[2:])
            else:
                self.defs = set(R[0]); self.uses = flat(R[1:])
                if re.match(r"v_(fmac|mac|dot2c|pk_fmac|writelane)", op) or self.dpp: self.uses |= set(R[0])
                if op.startswith("v_cndmask") and len(ops) == 3: self.uses.add(("vcc", 0))
        elif op.startswith("buffer_") or op.startswith("global_"):
            self.kind = "vmem"; lds = bool(re.search(r"\blds\b", rest)) or "load_lds" in op
            self.lds = lds
            if lds: self.uses = flat(R) | {("m0", 0)}
            elif "load" in op: self.defs = set(R[0]); self.uses = flat(R[1:])
            elif op.startswith("buffer_"):
                self.uses = flat(R); self.sdata = set(R[0]) if re.search(r"x3|x4", op) else set()
            else:
                self.uses = flat(R); self.sdata = set(R[1]) if re.search(r"x3|x4", op) else set()
            if op in ("buffer_wbl2", "buffer_inv"): self.uses = set(); self.defs = set()
        elif op.startswith("ds_"):
            self.kind = "ds"
            if "read" in op or "permute" in op or "swizzle" in op: self.defs = set(R[0]); self.uses = flat(R[1:])
            else: self.uses = flat(R)
        elif op.startswith("s_"):
            self.kind = "salu"
            if op.startswith(("s_cmp", "s_waitcnt", "s_barrier", "s_branch", "s_cbranch", "s_endpgm", "s_setprio", "s_sleep", "s_bitcmp")):
                self.uses = flat(R)
            else:
                self.defs = set(R[0]) if R else set(); self.uses = flat(R[1:])
                if "saveexec" in op: self.defs.add(("exec", 0))

def need(p, c):
    n = 0
    vec = lambda s: {r for r in s if r[0] in "va" and len(r[0]) == 1}
    sca = lambda s: {r for r in s if r[0] in ("s", "vcc")}
    if p.kind == "valu":
        d = vec(p.defs); sd = sca(p.defs)
        if c.kind == "mfma" and d & c.uses: n = max(n, 2)
        if c.kind == "valu":
            if p.trans and not c.trans and d & c.uses: n = max(n, 1)
            if (c.dpp or c.op.startswith("v_permlane")) and d & c.uses: n = max(n, 2)
            if c.op.startswith(("v_readlane", "v_readfirstlane")) and d & c.uses: n = max(n, 1)
            if sd & c.uses: n = max(n, 4 if c.op.startswith(("v_readlane", "v_writelane")) else 2)
        if c.kind == "vmem" and sd & c.uses: n = max(n, 5)
        if ("exec", 0) in p.defs: raise Exception("VALU exec write not modelled")
    if p.kind == "mfma":
        big = p.passes == 8
        if c.kind == "mfma":
            if p.defs & c.srcab: n = max(n, 12 if big else 8)
            if p.defs & c.srcc and not (p.dlist == c.clist and p.passes == c.passes): n = max(n, 10 if big else 6)
            if p.defs & c.defs and not (p.defs & c.srcc): n = max(n, 10 if big else 6)
        elif c.kind in ("valu", "vmem", "ds"):
            if p.defs & (c.uses | c.defs): n = max(n, 12 if big else 8)
            if c.kind == "valu" and p.srcc & c.defs: n = max(n, 7 if big else 3)
    if p.kind == "salu" and ("m0", 0) in p.defs and c.kind == "vmem" and getattr(c, "lds", False): n = max(n, 1)
    if p.kind == "vmem" and p.sdata and p.sdata & c.defs: n = max(n, 2 if c.kind in ("valu", "mfma") else 1)
    return n

class Asm:
    def __init__(self): self.L = []
    def __call__(self, s):
        if isinstance(s, (list, tuple)):
            for x in s: self(x)
            return
        for line in s.split("\n"):
            if line.strip(): self.L.append(line.strip())
    def finish(self):
        ins = [Ins(t) for t in self.L]; out = []; self.nops = 0
        for c in ins:
            if c.kind in ("valu", "mfma", "vmem", "ds", "salu"):
                dist = 0; pad = 0
                for p in reversed(out):
                    if dist >= 14: break
                    if p.op in ("s_branch", "s_endpgm"): break
                    k = need(p, c)
                    if k > dist: pad = max(pad, k - dist)
                    dist += p.ws
                if pad:
                    out.append(Ins(f"s_nop {pad - 1}")); self.nops += 1
            out.append(c)
        lab = {x.label: i for i, x in enumerate(out) if x.label}
        for i, b in enumerate(out):
            if b.op and b.op.startswith(("s_branch", "s_cbranch")) and b.ops[0] in lab:
                head = out[lab[b.ops[0]]:lab[b.ops[0]] + 40]
                dh = 0
                for c in head:
                    if dh >= 14: break
                    dist = dh + 1
                    for p in reversed(out[max(0, i - 20):i]):
                        if dist >= 14: break
                        if c.op and p.op and need(p, c) > dist:
                            raise Exception(f"hazard across branch {b.text}: {p.text} -> {c.text}")
                        dist += p.ws
                    dh += c.ws
                    if c.op in ("s_branch", "s_endpgm"): break
        return "\n".join(("" if x.label else "    ") + x.text for x in out)

def interleave(main, fill, per=1, start=0):
    out = []; fill = list(fill); k = 0; acc = 0.0
    for i, m in enumerate(main):
        out.append(m)
        if i >= start:
            acc += per
            while acc >= 1 and k < len(fill):
                out.append(fill[k]); k += 1; acc -= 1
    return out + fill[k:]

def vr(n, c=1): return f"v{n}" if c == 1 else f"v[{n}:{n + c - 1}]"
def ar(n, c=1): return f"a{n}" if c == 1 else f"a[{n}:{n + c - 1}]"
def sr(n, c=1): return f"s{n}" if c == 1 else f"s[{n}:{n + c - 1}]"

class Alloc:
    def __init__(self, start=0, limit=256): self.n = start; self.limit = limit
    def __call__(self, c=1, align=None):
        al = align or (2 if c > 1 else 1)
        self.n = (self.n + al - 1) // al * al
        r = self.n; self.n += c
        assert self.n <= self.limit, "out of registers"
        return r

def fhex(x):
    import struct
    return "0x%08x" % struct.unpack("<I", struct.pack("<f", x))[0]

def srd(a, d, base, nbytes, off=0):
    if off:
        a(f"s_add_u32 s{d}, s{base}, {off}\ns_addc_u32 s{d+1}, s{base+1}, 0")
    else:
        a(f"s_mov_b32 s{d}, s{base}\ns_mov_b32 s{d+1}, s{base+1}")
    a(f"s_mov_b32 s{d+2}, {nbytes}\ns_mov_b32 s{d+3}, 0x20000")

def kernel_text(name, body):
    return f".globl {name}\n.p2align 8\n.type {name},@function\n{name}:\n{body}\n"

def kernel_desc(name, vgpr, accum, sgpr=102):
    return (f".p2align 6\n.amdhsa_kernel {name}\n  .amdhsa_next_free_vgpr {vgpr}\n  .amdhsa_next_free_sgpr {sgpr}\n"
            f"  .amdhsa_accum_offset {accum}\n  .amdhsa_group_segment_fixed_size 0\n  .amdhsa_kernarg_size 80\n"
            f"  .amdhsa_user_sgpr_count 2\n  .amdhsa_user_sgpr_kernarg_segment_ptr 1\n  .amdhsa_system_sgpr_workgroup_id_x 1\n"
            f"  .amdhsa_float_denorm_mode_32 3\n.end_amdhsa_kernel\n")

STAMP = {"on": False}
STAMP_OFF = 0x3000000
def stamp(a, i):
    if isinstance(i, str):
        if i not in STAMP.get("sel", []): return
        i = STAMP["sel"].index(i)
    if STAMP["on"]: a(f"{'s_memtime' if STAMP.get('clk') else 's_memrealtime'} s[{64+2*i}:{65+2*i}]")
def stamp_flush(a, kid, n, v=8):
    if not STAMP["on"]: return
    n = len(STAMP["sel"])
    a("s_waitcnt vmcnt(0)"); stamp(a, n); a("s_waitcnt lgkmcnt(0)\ns_mov_b64 exec, 1")
    if STAMP.get("dbg"):
        for wg, wave, sel in STAMP["dbg"]:
            lab = f"dbg_skip_{wg}_{wave}"
            a(f"s_cmp_lg_u32 s2, {wg}\ns_cbranch_scc1 {lab}\ns_cmp_lg_u32 s3, {wave}\ns_cbranch_scc1 {lab}\ns_load_dwordx2 s[60:61], s[0:1], 64\ns_waitcnt lgkmcnt(0)")
            for slot, i in sel: a(f"v_mov_b32 v{v}, {4*slot}\nv_mov_b32 v{v+1}, s{64+2*i}\nglobal_store_dword v{v}, v{v+1}, s[60:61] offset:0")
            a(f"{lab}:")
        return
    a(f"s_lshl_b32 s62, s2, 2\ns_add_u32 s62, s62, s3\ns_lshl_b32 s62, s62, 7\ns_add_u32 s62, s62, {STAMP_OFF}\nv_mov_b32 v{v}, s62")
    for i in range(n + 1): a(f"v_mov_b32 v{v+1}, s{64+2*i}\nglobal_store_dword v{v}, v{v+1}, s[10:11] offset:{4*i}")
```

```python
import sys
from asmgen import *
import gen_row, gen_gemm
PFX = "sequential_preLN__spectral_gfnet__glu_gated_bilinear__prompt"
def build(path):
    n = PFX + "_kernel"
    t, nv, ao, lds = gen_gemm.gen_fused(n)
    ref = open("cdna_kernels/" + PFX + ".s.ref").read().split("\n")
    out = "\n".join(ref[:11]) + f"\n; @launch grid=(256,1,1) block=(256,1,1) lds={lds}\n"
    out += '.amdgcn_target "amdgcn-amd-amdhsa--gfx950"\n.text\n' + kernel_text(n, t) + 'code_end:\n.section .rodata,"a"\n'
    out += kernel_desc(n, nv, ao, 102 if STAMP["on"] else 64)
    if STAMP["on"]: out += "; stamps: " + " ".join(STAMP["sel"]) + " end\n"
    open(path, "w").write(out)
    print("vgpr", nv, "lds", lds, "lines", len(t.splitlines()), "nops", t.count("s_nop"))
if __name__ == "__main__":
    for o in list(sys.argv):
        if o.startswith("--var="):
            k, _, v = o[6:].partition(":"); gen_row.VAR[k] = (int(v) if v.isdigit() else v) if v else 1; sys.argv.remove(o)
    STAMP["sel"] = "start p1x p1end drain1 bar1 p2ld p2end drain2 bar2 p3ld p3end drain3 bar3 p4loop p4end drain4 bar4 p5loop".split()
    for o in list(sys.argv):
        if o.startswith("--sel="): STAMP["sel"] = o[6:].split(","); sys.argv.remove(o)
    if "--dbg" in sys.argv:
        STAMP["dbg"] = [(9, 0, list(enumerate([0, 1, 2, 4, 5, 6, 8, 9, 10, 12, 13, 14, 16, 17, 18])))]; sys.argv.remove("--dbg")
    if "--dbg2" in sys.argv:
        STAMP["sel"] = "start p1x p1end drain1 work1 bar1".split()
        STAMP["dbg"] = [(wg, 0, [(4*k + q, i) for q, i in enumerate([0, 2, 3, 5])]) for k, wg in enumerate((0, 9, 130, 255))]; sys.argv.remove("--dbg2")
    if "--clk" in sys.argv: STAMP["clk"] = True; sys.argv.remove("--clk")
    if "--stamp" in sys.argv: STAMP["on"] = True; sys.argv.remove("--stamp")
    build(sys.argv[1] if len(sys.argv) > 1 else "cdna_kernels/" + PFX + ".s")
```
